```python
import torch

def _softmax(x, axis=-1):
    return torch.softmax(x, dim=axis)

def _gelu(x):
    return torch.nn.functional.gelu(x, approximate='tanh')

def _silu(x):
    return torch.nn.functional.silu(x)

def _sigmoid(x):
    return torch.sigmoid(x)

def _layernorm(x, axis=-1, eps=1e-05):
    m = x.mean(dim=axis, keepdim=True)
    v = x.var(dim=axis, keepdim=True, unbiased=False)
    return (x - m) / torch.sqrt(v + eps)

def _scatter_add(tgt, idx, src, axis=0):
    return tgt.clone().index_add_(axis, idx, src)

def _segment_sum(src, seg, n):
    out = torch.zeros((n,) + src.shape[1:], dtype=src.dtype)
    return out.index_add_(0, seg, src)

def _pad(x, pw):
    flat = tuple((v for pair in reversed(pw) for v in pair))
    return torch.nn.functional.pad(x, flat)
kernel_name = 'gated_mix__memory_aug_recurrent_mem_tr__sliding_block__prompt'

def setup_inputs():

    _w = lambda a: (lambda t: t.to(torch.bfloat16) if t.is_floating_point() else t)(torch.as_tensor(a))

    def _A_setup():
        B, S, Dm = (1, 2048, 576)
        H, Dh = (32, 128)
        M, seg = (8, 32)
        seg = min(seg, S)
        S = S // seg * seg
        return {'x': _w((lambda *s: torch.randn(*s, dtype=torch.bfloat16) * 0.05)(B, S, Dm)), 'mem0': _w((lambda *s: torch.randn(*s, dtype=torch.bfloat16) * 1.6)(B, M, Dm)), 'Wq': _w((lambda *s: torch.randn(*s, dtype=torch.bfloat16) * 0.8)(Dm, H, Dh) * Dm ** (-0.5)), 'Wk': _w((lambda *s: torch.randn(*s, dtype=torch.bfloat16) * 0.8)(Dm, H, Dh) * Dm ** (-0.5)), 'Wv': _w((lambda *s: torch.randn(*s, dtype=torch.bfloat16) * 1.6)(Dm, H, Dh) * Dm ** (-0.5)), 'Wo': _w((lambda *s: torch.randn(*s, dtype=torch.bfloat16) * 1.6)(H, Dh, Dm) * (H * Dh) ** (-0.5)), 'seg_len': seg}
    _A_in = _A_setup()

    def _B_setup():
        B, S, D = (1, 2048, 576)
        return {'x': _w((lambda *s: torch.randn(*s, dtype=torch.bfloat16) * 0.05)(B, S, D)), 'wqkv': _w((lambda *s: torch.randn(*s, dtype=torch.bfloat16) * 1.6)(D, 3 * D)), 'wo': _w((lambda *s: torch.randn(*s, dtype=torch.bfloat16) * 0.05)(D, D))}
    _B_in = _B_setup()
    return {'A_x': _A_in['x'], 'A_mem0': _A_in['mem0'], 'A_Wq': _A_in['Wq'], 'A_Wk': _A_in['Wk'], 'A_Wv': _A_in['Wv'], 'A_Wo': _A_in['Wo'], 'A_seg_len': _A_in['seg_len'], 'B_x': _B_in['x'], 'B_wqkv': _B_in['wqkv'], 'B_wo': _B_in['wo'], 'gate_w': _w((lambda *s: torch.randn(*s, dtype=torch.bfloat16) * 0.05)(576) * 16.0)}

def reference(A_x, A_mem0, A_Wq, A_Wk, A_Wv, A_Wo, A_seg_len, B_x, B_wqkv, B_wo, gate_w):

    def _A_ref(x, mem0, Wq, Wk, Wv, Wo, seg_len):
        B, S, Dm = x.shape
        H, Dh = (Wq.shape[1], Wq.shape[2])
        M = mem0.shape[1]
        scale = Dh ** (-0.5)
        n_seg = S // seg_len
        L = M + seg_len
        idx = torch.arange(L)
        mask = (idx[:, None] < M) | (idx[:, None] >= idx[None, :])
        mem = mem0
        outs = []
        for s in range(n_seg):
            xs = x[:, s * seg_len:(s + 1) * seg_len, :].clone()
            h = torch.concatenate([mem, xs], axis=1)
            q = torch.einsum('btd,dhe->bhte', h, Wq)
            k = torch.einsum('btd,dhe->bhte', h, Wk)
            v = torch.einsum('btd,dhe->bhte', h, Wv)
            scores = torch.einsum('bhqe,bhke->bhqk', q, k) * scale
            scores = torch.where(mask[None, None], scores, -1000000000.0)
            p = _softmax(scores, axis=-1)
            o = torch.einsum('bhqk,bhke->bhqe', p, v)
            o = torch.einsum('bhte,hed->btd', o, Wo)
            mem = o[:, :M, :].clone()
            outs.append(o[:, M:, :])
        return torch.concatenate(outs, axis=1)

    def _B_ref(x, wqkv, wo):
        B, S, D = x.shape
        H = 32
        Dh = D // H
        W = 256
        qkv = (lambda x, *d: x.permute(*d))((x @ wqkv).reshape(B, S, 3, H, Dh), 2, 0, 3, 1, 4)
        q, k, v = (qkv[0], qkv[1], qkv[2])
        scores = torch.einsum('bhqd,bhkd->bhqk', q, k) * Dh ** (-0.5)
        idx = torch.arange(S)
        mask = (idx[:, None] - idx[None, :] >= 0) & (idx[:, None] - idx[None, :] < W)
        scores = torch.where(mask[None, None], scores, -1000000000.0)
        p = _softmax(scores, axis=-1)
        o = torch.einsum('bhqk,bhkd->bhqd', p, v)
        return (lambda x, *d: x.permute(*d))(o, 0, 2, 1, 3).reshape(B, S, D) @ wo
    x = A_x
    g = _sigmoid((x * gate_w).sum(-1, keepdims=True))
    a = _A_ref(x, A_mem0, A_Wq, A_Wk, A_Wv, A_Wo, A_seg_len)
    b = _B_ref(x, B_wqkv, B_wo)
    return g * a + (1 - g) * b
```

```python
import re

TRANS = ('v_exp_f32', 'v_log_f32', 'v_rcp_f32', 'v_rsq_f32', 'v_sqrt_f32', 'v_sin_f32', 'v_cos_f32', 'v_rcp_iflag_f32')

def v(i, n=1):
    return f"v{i}" if n == 1 else f"v[{i}:{i+n-1}]"
def a(i, n=1):
    return f"a{i}" if n == 1 else f"a[{i}:{i+n-1}]"
def s(i, n=1):
    return f"s{i}" if n == 1 else f"s[{i}:{i+n-1}]"

_reg_re = re.compile(r'^-?(?:abs\()?([vas])(?:(\d+)|\[(\d+):(\d+)\])\)?$')

def regs_of(op):
    op = op.strip()
    if op in ('vcc', 'vcc_lo', 'vcc_hi'):
        return {('vcc', 0)}
    if op in ('exec', 'exec_lo', 'exec_hi'):
        return {('exec', 0)}
    if op == 'm0':
        return {('m0', 0)}
    m = _reg_re.match(op)
    if not m:
        return set()
    k = m.group(1)
    if m.group(2) is not None:
        return {(k, int(m.group(2)))}
    return {(k, i) for i in range(int(m.group(3)), int(m.group(4)) + 1)}


class Ins:
    __slots__ = ('pos', 'kind', 'wr', 'rd', 'rdC', 'rdAB', 'passes', 'wide_store', 'mn', 'dpp', 'store_data')


class K:
    def __init__(self):
        self.lines = []
        self.hist = []
        self.pos = 0
        self.nlab = 0

    def raw(self, text):
        self.lines.append(text)

    def comment(self, text):
        self.lines.append("    ; " + text)

    def newlabel(self, base='L'):
        self.nlab += 1
        return f"{base}_{self.nlab}"

    def label(self, name):
        self.settle()
        self.lines.append(f"{name}:")

    def settle(self):
        need = 0
        for h in self.hist:
            d = self.pos - h.pos
            req = 0
            if h.kind == 'mfma':
                req = 8 if h.passes == 4 else 12
            elif h.kind in ('valu', 'trans'):
                req = 5 if any(r[0] in ('s', 'vcc') for r in h.wr) else 2
            elif h.wide_store:
                req = 2
            need = max(need, req - d)
        if need > 0:
            self.nop(need)

    def nop(self, n):
        while n > 0:
            k = min(n, 16)
            self.lines.append(f"    s_nop {k-1}")
            self.pos += k
            n -= k

    def __call__(self, text):
        text = text.strip()
        mn, _, rest = text.partition(' ')
        ops = []
        mods = ''
        if rest:
            parts = [p.strip() for p in rest.split(',')]
            last = parts[-1]
            if ' ' in last:
                l0, _, mods = last.partition(' ')
                parts[-1] = l0
            ops = parts
        ins = Ins()
        ins.mn = mn
        ins.wr = set(); ins.rd = set(); ins.rdC = set(); ins.rdAB = set()
        ins.passes = 0; ins.wide_store = False
        ins.dpp = ('quad_perm' in mods or 'row_' in mods or 'wave_' in mods or 'bound_ctrl' in mods)
        R = regs_of
        if mn.startswith('v_mfma'):
            ins.kind = 'mfma'
            ins.passes = 8 if '32x32' in mn else 4
            ins.wr = R(ops[0]); ins.rdAB = R(ops[1]) | R(ops[2]); ins.rdC = R(ops[3])
            ins.rd = ins.rdAB | ins.rdC
        elif mn.startswith('v_'):
            ins.kind = 'trans' if mn.replace('_e32', '').replace('_e64', '') in TRANS else 'valu'
            if mn.startswith('v_permlane') and 'swap' in mn:
                ins.wr = R(ops[0]) | R(ops[1]); ins.rd = set(ins.wr)
            elif mn.startswith('v_cmp'):
                ins.wr = R(ops[0])
                for o in ops[1:]: ins.rd |= R(o)
            elif '_co_' in mn or mn.startswith('v_mad_u64') or mn.startswith('v_div_scale'):
                ins.wr = R(ops[0]) | R(ops[1])
                for o in ops[2:]: ins.rd |= R(o)
            else:
                ins.wr = R(ops[0])
                for o in ops[1:]: ins.rd |= R(o)
                if mn.startswith('v_fmac') or mn.startswith('v_pk_fmac') or mn.startswith('v_writelane') or 'dst_unused:UNUSED_PRESERVE' in mods or ins.dpp:
                    ins.rd |= R(ops[0])
        elif mn.startswith('ds_'):
            ins.kind = 'ds'
            if mn.startswith('ds_read') or mn.startswith('ds_bpermute') or mn.startswith('ds_permute') or mn.startswith('ds_swizzle'):
                ins.wr = R(ops[0])
                for o in ops[1:]: ins.rd |= R(o)
            else:
                for o in ops: ins.rd |= R(o)
        elif mn.startswith('buffer_') or mn.startswith('global_'):
            ins.kind = 'vmem'
            if '_load_' in mn:
                ins.wr = R(ops[0])
                for o in ops[1:]: ins.rd |= R(o)
            elif 'atomic' in mn:
                for o in ops: ins.rd |= R(o)
                if 'sc0' in mods: ins.wr = R(ops[0])
            elif '_store_' in mn:
                for o in ops: ins.rd |= R(o)
                ins.wide_store = ('x4' in mn or 'x3' in mn)
                ins.store_data = R(ops[0] if mn.startswith('buffer_') else ops[1])
            else:
                pass
        else:
            ins.kind = 'salu'
            if mn.startswith('s_') and ops and not mn.startswith('s_cmp') and not mn.startswith('s_waitcnt') and not mn.startswith('s_branch') and not mn.startswith('s_cbranch'):
                ins.wr = R(ops[0])
                for o in ops[1:]: ins.rd |= R(o)
        need = 0
        for h in self.hist:
            d = self.pos - h.pos
            req = 0
            if h.kind in ('valu', 'trans'):
                wv = {r for r in h.wr if r[0] in ('v', 'a')}
                ws = {r for r in h.wr if r[0] in ('s', 'vcc')}
                if ins.kind == 'mfma' and (wv & ins.rd): req = max(req, 2)
                if h.kind == 'trans' and ins.kind == 'valu' and (wv & (ins.rd | ins.wr)): req = max(req, 1)
                if ins.kind in ('valu', 'trans'):
                    if ws & ins.rd:
                        req = max(req, 4 if mn.startswith('v_readlane') or mn.startswith('v_writelane') else 2)
                    if (mn.startswith('v_readfirstlane') or mn.startswith('v_readlane')) and (wv & ins.rd): req = max(req, 1)
                    if (ins.dpp or mn.startswith('v_permlane')) and (wv & ins.rd): req = max(req, 2)
                if ins.kind == 'vmem' and (ws & ins.rd): req = max(req, 5)
            elif h.kind == 'mfma':
                big = 8 if h.passes == 4 else 12
                mid = 6 if h.passes == 4 else 10
                if ins.kind == 'mfma':
                    if h.wr & ins.rdAB: req = max(req, big)
                    if h.wr & ins.rdC:
                        if not (h.wr == ins.rdC and h.passes == ins.passes): req = max(req, mid)
                    elif h.wr & ins.wr: req = max(req, big)
                else:
                    if h.wr & (ins.rd | ins.wr): req = max(req, big)
                if ins.kind in ('valu', 'trans') and (h.rdC & ins.wr): req = max(req, 3 if h.passes == 4 else 7)
                if ins.kind in ('ds', 'vmem') and (h.rdC & ins.wr): req = max(req, 3 if h.passes == 4 else 7)
            elif h.kind == 'vmem' and h.wide_store:
                if h.store_data & ins.wr: req = max(req, 2 if ins.kind in ('valu', 'trans') else 1)
            need = max(need, req - d)
        if need > 0:
            self.nop(need)
        self.lines.append("    " + text)
        ins.pos = self.pos + 1
        self.pos += 1
        self.hist.append(ins)
        if len(self.hist) > 24:
            self.hist.pop(0)
        if mn.startswith('s_branch') or mn.startswith('s_cbranch') or mn.startswith('s_setpc'):
            pass

    def branch(self, text):
        self.settle()
        self(text)

    def text(self):
        return "\n".join(self.lines) + "\n"
```

```python
from asmdsl import *
MiB = 1 << 20
WS_QX = 0
WS_KX = 16 * MiB
WS_VT = 32 * MiB
WS_OA = 48 * MiB
WS_QKB = 64 * MiB
WS_VTB = 72 * MiB
WS_OB = 76 * MiB
WS_KM = 80 * MiB
WS_VMT = 84 * MiB
WS_GATE = 88 * MiB
WS_XCH = 90 * MiB
WS_BYTES = 268435456

P_X, P_MEM0, P_WQ, P_WK, P_WV, P_WO, P_SEG, P_BX, P_WQKVB, P_WOB, P_GW, P_OUT, P_DBG, P_WS = [64 + 2 * i for i in range(14)]

def load_kernargs(k):
    k("s_load_dwordx16 s[64:79], s[0:1], 0")
    k("s_load_dwordx8 s[80:87], s[0:1], 64")
    k("s_load_dwordx4 s[88:91], s[0:1], 96")
    k("s_waitcnt lgkmcnt(0)")

def make_srd(k, d, p, nbytes):
    k(f"s_mov_b32 s{d}, s{p}")
    k(f"s_and_b32 s{d+1}, s{p+1}, 0xffff")
    k(f"s_mov_b32 s{d+2}, {nbytes}")
    k(f"s_mov_b32 s{d+3}, 0x00020000")

def kernel_begin(k, name):
    k.raw(f".globl {name}")
    k.raw(".p2align 8")
    k.raw(f".type {name},@function")
    k.raw(f"{name}:")
    k.hist = []

def kernel_desc(name, nv, acc_off, ns=102):
    return f""".amdhsa_kernel {name}
  .amdhsa_next_free_vgpr {nv}
  .amdhsa_next_free_sgpr {ns}
  .amdhsa_accum_offset {acc_off}
  .amdhsa_group_segment_fixed_size 0
  .amdhsa_kernarg_size 112
  .amdhsa_user_sgpr_count 2
  .amdhsa_user_sgpr_kernarg_segment_ptr 1
  .amdhsa_system_sgpr_workgroup_id_x 1
.end_amdhsa_kernel
"""
```

```python
from asmdsl import *

class Gemm:
    def __init__(self, k, BM, BN, vbase=8, acc0=0, lds0=0):
        self.k = k
        self.BM, self.BN = BM, BN
        self.WM, self.WN = BM // 2, BN // 2
        self.MT, self.NT = self.WM // 16, self.WN // 16
        self.acc0 = acc0
        self.lds0 = lds0
        self.ASTR = 144
        self.BSTR = BN * 2 + 32
        self.ABYTES = BM * self.ASTR
        self.SBUF = self.ABYTES + 64 * self.BSTR
        self.nA = BM // 32
        self.cB = BN * 2 // 16
        self.rB = 256 // self.cB
        self.nB = 64 // self.rB
        r = vbase
        self.vAoff = r; r += self.nA
        self.vBoff = r; r += self.nB
        self.vAw = r; r += 2
        self.vBw = r; r += 2
        self.vAr = r; r += 2
        self.vBr = r; r += 2
        self.vtmp = r; r += 4
        r = (r + 3) // 4 * 4
        self.SA = r; r += 4 * self.nA
        self.SB = r; r += 4 * self.nB
        self.FA = r; r += 2 * self.MT * 4
        self.FB = r; r += 2 * self.NT * 4
        self.vend = r
        self.lds_bytes = lds0 + 2 * self.SBUF

    def acc(self, i, j):
        return self.acc0 + (i * self.NT + j) * 4

    def setup_lds_addrs(self):
        k = self.k; t = self.vtmp
        k(f"v_lshrrev_b32 v{t}, 3, v0")
        k(f"v_mul_u32_u24 v{t}, {self.ASTR}, v{t}")
        k(f"v_and_b32 v{t+1}, 7, v0")
        k(f"v_lshl_add_u32 v{self.vAw}, v{t+1}, 4, v{t}")
        if self.lds0: k(f"v_add_u32 v{self.vAw}, {self.lds0}, v{self.vAw}")
        k(f"v_add_u32 v{self.vAw+1}, {self.SBUF}, v{self.vAw}")
        sh = self.cB.bit_length() - 1
        k(f"v_lshrrev_b32 v{t}, {sh}, v0")
        k(f"v_mul_u32_u24 v{t}, {self.BSTR}, v{t}")
        k(f"v_and_b32 v{t+1}, {self.cB-1}, v0")
        k(f"v_lshl_add_u32 v{self.vBw}, v{t+1}, 4, v{t}")
        k(f"v_add_u32 v{self.vBw}, {self.lds0 + self.ABYTES}, v{self.vBw}")
        k(f"v_add_u32 v{self.vBw+1}, {self.SBUF}, v{self.vBw}")
        k(f"v_lshrrev_b32 v{t}, 7, v0")
        k(f"v_mul_u32_u24 v{t}, {self.WM}, v{t}")
        k(f"v_and_b32 v{t+1}, 15, v0")
        k(f"v_add_u32 v{t}, v{t}, v{t+1}")
        k(f"v_mul_u32_u24 v{t}, {self.ASTR}, v{t}")
        k(f"v_bfe_u32 v{t+1}, v0, 4, 2")
        k(f"v_lshl_add_u32 v{self.vAr}, v{t+1}, 4, v{t}")
        if self.lds0: k(f"v_add_u32 v{self.vAr}, {self.lds0}, v{self.vAr}")
        k(f"v_add_u32 v{self.vAr+1}, {self.SBUF}, v{self.vAr}")
        k(f"v_bfe_u32 v{t}, v0, 4, 2")
        k(f"v_lshlrev_b32 v{t}, 3, v{t}")
        k(f"v_bfe_u32 v{t+1}, v0, 2, 2")
        k(f"v_add_u32 v{t}, v{t}, v{t+1}")
        k(f"v_mul_u32_u24 v{t}, {self.BSTR}, v{t}")
        k(f"v_bfe_u32 v{t+1}, v0, 6, 1")
        k(f"v_mul_u32_u24 v{t+1}, {self.WN*2}, v{t+1}")
        k(f"v_add_u32 v{t}, v{t}, v{t+1}")
        k(f"v_and_b32 v{t+1}, 3, v0")
        k(f"v_lshl_add_u32 v{self.vBr}, v{t+1}, 3, v{t}")
        k(f"v_add_u32 v{self.vBr}, {self.lds0 + self.ABYTES}, v{self.vBr}")
        k(f"v_add_u32 v{self.vBr+1}, {self.SBUF}, v{self.vBr}")

    def setup_global(self, s_lda, s_abase, s_ldb, s_bbase):
        k = self.k; t = self.vtmp
        k(f"v_lshrrev_b32 v{t}, 3, v0")
        k(f"v_mul_lo_u32 v{t}, v{t}, s{s_lda}")
        k(f"v_and_b32 v{t+1}, 7, v0")
        k(f"v_lshl_add_u32 v{t}, v{t+1}, 4, v{t}")
        k(f"v_add_u32 v{self.vAoff}, s{s_abase}, v{t}")
        k(f"v_mov_b32 v{t+2}, s{s_lda}")
        for j in range(1, self.nA):
            k(f"v_lshl_add_u32 v{self.vAoff+j}, v{t+2}, 5, v{self.vAoff+j-1}")
        sh = self.cB.bit_length() - 1
        k(f"v_lshrrev_b32 v{t}, {sh}, v0")
        k(f"v_mul_lo_u32 v{t}, v{t}, s{s_ldb}")
        k(f"v_and_b32 v{t+1}, {self.cB-1}, v0")
        k(f"v_lshl_add_u32 v{t}, v{t+1}, 4, v{t}")
        k(f"v_add_u32 v{self.vBoff}, s{s_bbase}, v{t}")
        k(f"v_mov_b32 v{t+2}, s{s_ldb}")
        rsh = self.rB.bit_length() - 1
        for j in range(1, self.nB):
            k(f"v_lshl_add_u32 v{self.vBoff+j}, v{t+2}, {rsh}, v{self.vBoff+j-1}")

    def zero_acc(self):
        for i in range(self.MT * self.NT * 4):
            self.k(f"v_accvgpr_write_b32 a{self.acc0+i}, 0")

    def gload(self, srdA, srdB, sKA, sKB):
        k = self.k
        for j in range(self.nA):
            k(f"buffer_load_dwordx4 {v(self.SA+4*j,4)}, v{self.vAoff+j}, {s(srdA,4)}, s{sKA} offen")
        for j in range(self.nB):
            k(f"buffer_load_dwordx4 {v(self.SB+4*j,4)}, v{self.vBoff+j}, {s(srdB,4)}, s{sKB} offen")

    def lwrite(self, buf):
        k = self.k
        for j in range(self.nA):
            k(f"ds_write_b128 v{self.vAw+buf}, {v(self.SA+4*j,4)} offset:{j*32*self.ASTR}")
        for j in range(self.nB):
            k(f"ds_write_b128 v{self.vBw+buf}, {v(self.SB+4*j,4)} offset:{j*self.rB*self.BSTR}")

    def fread(self, buf, ks):
        k = self.k
        fa = self.FA + ks * self.MT * 4
        fb = self.FB + ks * self.NT * 4
        for i in range(self.MT):
            k(f"ds_read_b128 {v(fa+4*i,4)}, v{self.vAr+buf} offset:{i*16*self.ASTR + ks*64}")
        for j in range(self.NT):
            for hh in range(2):
                k(f"ds_read_b64_tr_b16 {v(fb+4*j+2*hh,2)}, v{self.vBr+buf} offset:{(ks*32+4*hh)*self.BSTR + j*32}")

    def mfmas(self, ks, variant):
        k = self.k
        fa = self.FA + ks * self.MT * 4
        fb = self.FB + ks * self.NT * 4
        for i in range(self.MT):
            for j in range(self.NT):
                c = a(self.acc(i, j), 4)
                if variant == 0:
                    k(f"v_mfma_f32_16x16x32_bf16 {c}, {v(fb+4*j,4)}, {v(fa+4*i,4)}, {c}")
                else:
                    k(f"v_mfma_f32_16x16x32_bf16 {c}, {v(fa+4*i,4)}, {v(fb+4*j,4)}, {c}")

    def stage(self, buf, variant, do_write, do_load, srdA, srdB, sKA, sKB, s_ldb64):
        k = self.k
        nread = self.MT + 2 * self.NT
        self.fread(buf, 0)
        self.fread(buf, 1)
        k(f"s_waitcnt lgkmcnt({min(nread,15)})")
        self.mfmas(0, variant)
        k("s_waitcnt lgkmcnt(0)")
        if do_write:
            k("s_waitcnt vmcnt(0)")
            self.lwrite(buf ^ 1)
        if do_load:
            k(f"s_add_u32 s{sKA}, s{sKA}, 128")
            k(f"s_add_u32 s{sKB}, s{sKB}, s{s_ldb64}")
            self.gload(srdA, srdB, sKA, sKB)
        self.mfmas(1, variant)
        if do_write:
            k("s_waitcnt lgkmcnt(0)")
            k("s_barrier")

    def run(self, K, variant, srdA, srdB, sKA, sKB, s_ldb64, s_cnt=None, first_barrier=True):
        k = self.k
        nst = K // 64
        self.gload(srdA, srdB, sKA, sKB)
        k("s_waitcnt vmcnt(0)")
        if first_barrier:
            k("s_barrier")
        self.lwrite(0)
        if nst > 1:
            k(f"s_add_u32 s{sKA}, s{sKA}, 128")
            k(f"s_add_u32 s{sKB}, s{sKB}, s{s_ldb64}")
            self.gload(srdA, srdB, sKA, sKB)
        k("s_waitcnt lgkmcnt(0)")
        k("s_barrier")
        if nst <= 10:
            for i in range(nst):
                self.stage(i & 1, variant, i + 1 < nst, i + 2 < nst, srdA, srdB, sKA, sKB, s_ldb64)
        else:
            assert nst % 2 == 0
            k(f"s_mov_b32 s{s_cnt}, {(nst-2)//2}")
            L = k.newlabel('Lg')
            k.label(L)
            self.stage(0, variant, True, True, srdA, srdB, sKA, sKB, s_ldb64)
            self.stage(1, variant, True, True, srdA, srdB, sKA, sKB, s_ldb64)
            k(f"s_sub_u32 s{s_cnt}, s{s_cnt}, 1")
            k(f"s_cmp_lg_u32 s{s_cnt}, 0")
            k.branch(f"s_cbranch_scc1 {L}")
            self.stage(0, variant, True, False, srdA, srdB, sKA, sKB, s_ldb64)
            self.stage(1, variant, False, False, srdA, srdB, sKA, sKB, s_ldb64)
```

```python
from common import *

def rnd_pairs(k, regs, tmp):
    for i in regs[::2]:
        k(f"v_cvt_pk_bf16_f32 v{tmp}, v{i}, v{i+1}")
        k(f"v_lshlrev_b32 v{i}, 16, v{tmp}")
        k(f"v_and_b32 v{i+1}, 0xffff0000, v{tmp}")

def xlane(k, op, r, t):
    k(f"v_mov_b32 v{t}, v{r}"); k(f"v_permlane16_swap_b32 v{r}, v{t}"); k(f"{op} v{r}, v{r}, v{t}")
    k(f"v_mov_b32 v{t}, v{r}"); k(f"v_permlane32_swap_b32 v{r}, v{t}"); k(f"{op} v{r}, v{r}, v{t}")

def gen_attna(k):
    name = "attna_kernel"
    kernel_begin(k, name)
    Lend = k.newlabel('Lend')
    k("s_cmp_ge_u32 s2, 512")
    k.branch(f"s_cbranch_scc1 {Lend}")
    load_kernargs(k)
    make_srd(k, 16, P_WS, WS_BYTES)
    make_srd(k, 8, P_X, 2048 * 1152)
    make_srd(k, 12, P_GW, 1152)
    k("v_lshrrev_b32 v1, 6, v0")
    k("v_readfirstlane_b32 s25, v1")
    k("s_lshr_b32 s20, s2, 3")
    k("s_and_b32 s21, s2, 7")
    k("s_lshl_b32 s21, s21, 2")
    k("s_add_u32 s21, s21, s25")
    k("v_and_b32 v1, 63, v0")
    k("v_lshlrev_b32 v2, 4, v1")
    k("v_and_b32 v3, 15, v1")
    k("v_lshrrev_b32 v4, 4, v1")
    k("v_and_b32 v5, 7, v1")
    k("v_lshl_add_u32 v5, v4, 3, v5")
    k("v_lshlrev_b32 v5, 4, v5")
    k("v_and_b32 v6, 31, v1")
    k("v_lshlrev_b32 v6, 4, v6")
    k("s_lshl_b32 s22, s20, 18")
    k("s_lshl_b32 s23, s21, 12")
    k("s_add_u32 s22, s22, s23")
    QF = lambda t, ks: 16 + (t * 4 + ks) * 4
    KF = lambda t, ks: 48 + (t * 4 + ks) * 4
    KM = lambda ks: 80 + ks * 4
    VT = lambda et: 96 + et * 4
    VM = lambda w: 128 + w * 4
    for t in range(2):
        k(f"s_add_u32 s24, s22, {WS_QX + t*131072}")
        for ks in range(4):
            k(f"buffer_load_dwordx4 {v(QF(t,ks),4)}, v2, s[16:19], s24 offen offset:{ks*1024}")
    for t in range(2):
        k(f"s_add_u32 s24, s22, {WS_KX + t*131072}")
        for ks in range(4):
            k(f"buffer_load_dwordx4 {v(KF(t,ks),4)}, v2, s[16:19], s24 offen offset:{ks*1024}")
    k("s_lshl_b32 s24, s20, 16"); k("s_lshl_b32 s26, s21, 11"); k("s_add_u32 s24, s24, s26")
    k(f"s_add_u32 s26, s24, {WS_KM}")
    for ks in range(4):
        k(f"buffer_load_dwordx4 {v(KM(ks),4)}, v5, s[16:19], s26 offen offset:{ks*512}")
    k(f"s_add_u32 s26, s24, {WS_VMT}")
    for w in range(4):
        k(f"buffer_load_dwordx4 {v(VM(w),4)}, v6, s[16:19], s26 offen offset:{w*512}")
    k("s_lshl_b32 s24, s20, 18"); k("s_lshl_b32 s26, s21, 13"); k("s_add_u32 s24, s24, s26")
    k(f"s_add_u32 s24, s24, {WS_VT}")
    k("s_add_u32 s26, s24, 4096")
    for et in range(8):
        k(f"buffer_load_dwordx4 {v(VT(et),4)}, v2, s[16:19], s{24 if et < 4 else 26} offen offset:{(et%4)*1024}")
    k("s_lshl_b32 s27, s20, 5"); k("s_add_u32 s27, s27, s21"); k("s_mul_i32 s28, s27, 1152")
    k("buffer_load_dwordx4 v[200:203], v2, s[8:11], s28 offen")
    k("buffer_load_dwordx4 v[204:207], v2, s[12:15], 0 offen")
    k("v_mov_b32 v208, 0"); k("v_mov_b32 v209, 0"); k("v_mov_b32 v210, 0"); k("v_mov_b32 v211, 0")
    k("v_mov_b32 v212, 0"); k("v_mov_b32 v213, 0"); k("v_mov_b32 v214, 0"); k("v_mov_b32 v215, 0")
    k("s_mov_b64 exec, 0xff")
    k("buffer_load_dwordx4 v[208:211], v2, s[8:11], s28 offen offset:1024")
    k("buffer_load_dwordx4 v[212:215], v2, s[12:15], 0 offen offset:1024")
    k("s_mov_b64 exec, -1")
    k("s_waitcnt vmcnt(16)")
    SA, SB, SC_, SD, SE = 144, 148, 152, 156, 160
    for ks in range(4):
        c = lambda r: (v(r, 4) if ks else "0")
        k(f"v_mfma_f32_16x16x32_bf16 {v(SA,4)}, {v(KF(0,ks),4)}, {v(QF(0,ks),4)}, {c(SA)}")
        k(f"v_mfma_f32_16x16x32_bf16 {v(SB,4)}, {v(KF(0,ks),4)}, {v(QF(1,ks),4)}, {c(SB)}")
        k(f"v_mfma_f32_16x16x32_bf16 {v(SC_,4)}, {v(KF(1,ks),4)}, {v(QF(1,ks),4)}, {c(SC_)}")
        k(f"v_mfma_f32_16x16x32_bf16 {v(SD,4)}, {v(KM(ks),4)}, {v(QF(0,ks),4)}, {c(SD)}")
        k(f"v_mfma_f32_16x16x32_bf16 {v(SE,4)}, {v(KM(ks),4)}, {v(QF(1,ks),4)}, {c(SE)}")
    allr = list(range(144, 164))
    rnd_pairs(k, allr, 7)
    k("s_mov_b32 s30, 0x3db504f3")
    for i in allr: k(f"v_mul_f32 v{i}, s30, v{i}")
    rnd_pairs(k, allr, 7)
    k("v_mov_b32 v8, 0xf149f2ca")
    k("v_lshlrev_b32 v9, 2, v4")
    for r in range(4):
        k(f"v_add_u32 v10, {r}, v9")
        k("v_cmp_le_u32 vcc, v10, v3")
        k(f"v_cndmask_b32 v{SA+r}, v8, v{SA+r}, vcc")
        k(f"v_cndmask_b32 v{SC_+r}, v8, v{SC_+r}, vcc")
    k("v_cmp_gt_u32 vcc, 2, v4")
    for r in range(4):
        k(f"v_cndmask_b32 v{SD+r}, v8, v{SD+r}, vcc")
        k(f"v_cndmask_b32 v{SE+r}, v8, v{SE+r}, vcc")
    k("s_mov_b32 s31, 0x3fb8aa3b")
    def softmax(regs, m, t):
        k(f"v_max3_f32 v{m}, v{regs[0]}, v{regs[1]}, v{regs[2]}")
        i = 3
        while i < len(regs):
            if i + 1 < len(regs):
                k(f"v_max3_f32 v{m}, v{m}, v{regs[i]}, v{regs[i+1]}"); i += 2
            else:
                k(f"v_max_f32 v{m}, v{m}, v{regs[i]}"); i += 1
        xlane(k, "v_max_f32", m, t)
        for r in regs: k(f"v_sub_f32 v{r}, v{r}, v{m}")
        for r in regs: k(f"v_mul_f32 v{r}, s31, v{r}")
        for r in regs: k(f"v_exp_f32 v{r}, v{r}")
        k(f"v_add_f32 v{m}, v{regs[0]}, v{regs[1]}")
        for r in regs[2:]: k(f"v_add_f32 v{m}, v{m}, v{r}")
        xlane(k, "v_add_f32", m, t)
        k(f"v_rcp_f32 v{m}, v{m}")
        for r in regs: k(f"v_mul_f32 v{r}, v{r}, v{m}")
    softmax(list(range(SA, SA+4)) + list(range(SD, SD+4)), 10, 11)
    softmax(list(range(SB, SB+8)) + list(range(SE, SE+4)), 12, 13)
    k(f"v_cvt_pk_bf16_f32 v164, v{SA}, v{SA+1}"); k(f"v_cvt_pk_bf16_f32 v165, v{SA+2}, v{SA+3}")
    k("v_mov_b32 v166, 0"); k("v_mov_b32 v167, 0")
    k(f"v_cvt_pk_bf16_f32 v168, v{SD}, v{SD+1}"); k(f"v_cvt_pk_bf16_f32 v169, v{SD+2}, v{SD+3}")
    k(f"v_cvt_pk_bf16_f32 v170, v{SE}, v{SE+1}"); k(f"v_cvt_pk_bf16_f32 v171, v{SE+2}, v{SE+3}")
    k(f"v_cvt_pk_bf16_f32 v172, v{SB}, v{SB+1}"); k(f"v_cvt_pk_bf16_f32 v173, v{SB+2}, v{SB+3}")
    k(f"v_cvt_pk_bf16_f32 v174, v{SC_}, v{SC_+1}"); k(f"v_cvt_pk_bf16_f32 v175, v{SC_+2}, v{SC_+3}")
    k("s_waitcnt vmcnt(4)")
    O = lambda qt, et: 16 + (qt * 8 + et) * 4
    for qt in range(2):
        px = 164 if qt == 0 else 172
        pm = 168 if qt == 0 else 170
        for et in range(8):
            k(f"v_mfma_f32_16x16x32_bf16 {v(O(qt,et),4)}, {v(VT(et),4)}, {v(px,4)}, 0")
        for et in range(8):
            k(f"v_mfma_f32_16x16x16_bf16 {v(O(qt,et),4)}, {v(VM(et//2)+2*(et%2),2)}, {v(pm,2)}, {v(O(qt,et),4)}")
    k("v_lshlrev_b32 v8, 13, v3")
    k("v_lshl_add_u32 v8, v4, 3, v8")
    k("s_lshl_b32 s24, s20, 18"); k("s_lshl_b32 s26, s21, 8"); k("s_add_u32 s24, s24, s26")
    k(f"s_add_u32 s24, s24, {WS_OA}")
    k("s_add_u32 s26, s24, 131072")
    for qt in range(2):
        for et in range(8):
            o = O(qt, et)
            k(f"v_cvt_pk_bf16_f32 v{o}, v{o}, v{o+1}"); k(f"v_cvt_pk_bf16_f32 v{o+1}, v{o+2}, v{o+3}")
            k(f"buffer_store_dwordx2 {v(o,2)}, v8, s[16:19], s{24 if qt == 0 else 26} offen offset:{et*32}")
    k("s_waitcnt vmcnt(16)")
    k("v_mov_b32 v100, 0")
    for j in range(8):
        xr = 200 + j if j < 4 else 204 + j
        wr = xr + 4
        k(f"v_lshlrev_b32 v96, 16, v{xr}"); k(f"v_and_b32 v97, 0xffff0000, v{xr}")
        k(f"v_lshlrev_b32 v98, 16, v{wr}"); k(f"v_and_b32 v99, 0xffff0000, v{wr}")
        k("v_mul_f32 v96, v96, v98"); k("v_mul_f32 v97, v97, v99")
        rnd_pairs(k, [96, 97], 98)
        k("v_add_f32 v100, v100, v96"); k("v_add_f32 v100, v100, v97")
    k("v_add_f32_dpp v100, v100, v100 quad_perm:[1,0,3,2] row_mask:0xf bank_mask:0xf")
    k("v_add_f32_dpp v100, v100, v100 quad_perm:[2,3,0,1] row_mask:0xf bank_mask:0xf")
    k("v_add_f32_dpp v100, v100, v100 row_half_mirror row_mask:0xf bank_mask:0xf")
    k("v_add_f32_dpp v100, v100, v100 row_mirror row_mask:0xf bank_mask:0xf")
    xlane(k, "v_add_f32", 100, 101)
    k("v_mov_b32 v101, v100")
    rnd_pairs(k, [100, 101], 98)
    k("v_mul_f32 v100, 0xbfb8aa3b, v100")
    k("v_exp_f32 v100, v100")
    k("v_add_f32 v100, 1.0, v100")
    k("v_rcp_f32 v100, v100")
    k("v_mov_b32 v101, v100")
    rnd_pairs(k, [100, 101], 98)
    k("s_lshl_b32 s27, s27, 2")
    k(f"s_add_u32 s27, s27, {WS_GATE}")
    k("v_mov_b32 v101, 0")
    k("s_mov_b64 exec, 1")
    k("buffer_store_dword v100, v101, s[16:19], s27 offen")
    k.label(Lend)
    k("s_endpgm")
    return name, 216
```

```python
from common import *
from k_attna import rnd_pairs, xlane

def gen_attnb(k):
    name = "attnb_kernel"
    kernel_begin(k, name)
    Lend = k.newlabel('Lend')
    k("s_cmp_ge_u32 s2, 1024")
    k.branch(f"s_cbranch_scc1 {Lend}")
    load_kernargs(k)
    make_srd(k, 16, P_WS, WS_BYTES)
    k(f"s_add_u32 s8, s{P_WS}, {WS_QKB}")
    k(f"s_addc_u32 s9, s{P_WS+1}, 0")
    k("s_and_b32 s9, s9, 0xffff")
    k(f"s_mov_b32 s10, {2048*2304}")
    k("s_mov_b32 s11, 0x00020000")
    k("v_lshrrev_b32 v1, 6, v0")
    k("v_readfirstlane_b32 s25, v1")
    k("s_lshr_b32 s20, s2, 3")
    k("s_and_b32 s21, s2, 7")
    k("s_lshl_b32 s21, s21, 2")
    k("s_add_u32 s21, s21, s25")
    k("v_and_b32 v1, 63, v0")
    k("v_and_b32 v3, 15, v1")
    k("v_lshrrev_b32 v4, 4, v1")
    k("v_mul_u32_u24 v5, 2304, v3")
    k("v_lshl_add_u32 v5, v4, 4, v5")
    k("s_mul_i32 s22, s21, 36")
    k("v_add_u32 v5, s22, v5")
    k("s_mul_i32 s23, s20, 36864")
    k("buffer_load_dwordx4 v[8:11], v5, s[8:11], s23 offen")
    KF = lambda u: 16 + 4 * u
    for u in range(17):
        k(f"s_add_i32 s26, s20, {u-16}")
        k("s_max_i32 s26, s26, 0")
        k("s_mul_i32 s26, s26, 36864")
        k(f"s_add_u32 s26, s26, 1152")
        k(f"buffer_load_dwordx4 {v(KF(u),4)}, v5, s[8:11], s26 offen")
    k("v_add_u32 v6, s21, v3")
    k("s_mul_i32 s22, s21, 18")
    k("v_add_u32 v6, s22, v3")
    k("v_lshlrev_b32 v6, 12, v6")
    k("v_lshl_add_u32 v6, v4, 3, v6")
    VF = lambda t, p: 160 + (t * 9 + p) * 4
    for p in range(9):
        for hh in range(2):
            u = min(2 * p + hh, 16)
            k(f"s_add_i32 s26, s20, {u-16}")
            k("s_max_i32 s26, s26, 0")
            k("s_lshl_b32 s26, s26, 5")
            k(f"s_add_u32 s26, s26, {WS_VTB}")
            k("s_add_u32 s27, s26, 65536")
            k(f"buffer_load_dwordx2 {v(VF(0,p)+2*hh,2)}, v6, s[16:19], s26 offen")
            k(f"buffer_load_dwordx2 {v(VF(1,p)+2*hh,2)}, v6, s[16:19], s27 offen")
    k("s_waitcnt vmcnt(53)")
    k("v_cmp_gt_u32 vcc, 3, v4")
    k("v_cndmask_b32 v8, 0, v8, vcc")
    k("v_cmp_gt_u32 vcc, 2, v4")
    for r in (9, 10, 11): k(f"v_cndmask_b32 v{r}, 0, v{r}, vcc")
    S = lambda u: 88 + 4 * u
    for u in range(17):
        k(f"s_waitcnt vmcnt({36 + 16 - u})")
        k(f"v_mfma_f32_16x16x32_bf16 {v(S(u),4)}, {v(KF(u),4)}, v[8:11], 0")
    allr = list(range(88, 156))
    rnd_pairs(k, allr, 7)
    k("s_mov_b32 s30, 0x3e715bef")
    for i in allr: k(f"v_mul_f32 v{i}, s30, v{i}")
    rnd_pairs(k, allr, 7)
    k("v_mov_b32 v12, 0xf149f2ca")
    k("v_lshlrev_b32 v13, 2, v4")
    for r in range(4):
        k(f"v_add_u32 v14, {r}, v13")
        k("v_cmp_le_u32 vcc, v14, v3")
        k(f"v_cndmask_b32 v{S(16)+r}, v12, v{S(16)+r}, vcc")
        k(f"v_cndmask_b32 v{S(0)+r}, v{S(0)+r}, v12, vcc")
    Lskip = k.newlabel('Lsk')
    k("s_cmp_ge_u32 s20, 16")
    k.branch(f"s_cbranch_scc1 {Lskip}")
    for u in range(16):
        k(f"s_cmp_ge_u32 s20, {16-u}")
        k("s_cselect_b64 s[28:29], -1, 0")
        for r in range(4):
            k(f"v_cndmask_b32 v{S(u)+r}, v12, v{S(u)+r}, s[28:29]")
    k.label(Lskip)
    k(f"v_max3_f32 v12, v88, v89, v90"); k(f"v_max3_f32 v13, v91, v92, v93")
    i = 94
    while i < 156:
        k(f"v_max3_f32 v12, v12, v{i}, v{i+1}")
        if i + 3 < 156: k(f"v_max3_f32 v13, v13, v{i+2}, v{i+3}")
        i += 4
    k("v_max_f32 v12, v12, v13")
    xlane(k, "v_max_f32", 12, 13)
    k("s_mov_b32 s31, 0x3fb8aa3b")
    for r in allr: k(f"v_sub_f32 v{r}, v{r}, v12")
    for r in allr: k(f"v_mul_f32 v{r}, s31, v{r}")
    for r in allr: k(f"v_exp_f32 v{r}, v{r}")
    k("v_pk_add_f32 v[12:13], v[88:89], v[90:91]")
    for i in range(92, 156, 2): k(f"v_pk_add_f32 v[12:13], v[12:13], {v(i,2)}")
    k("v_add_f32 v12, v12, v13")
    xlane(k, "v_add_f32", 12, 13)
    k("v_rcp_f32 v12, v12")
    k("v_mov_b32 v13, v12")
    for i in range(88, 156, 2): k(f"v_pk_mul_f32 {v(i,2)}, {v(i,2)}, v[12:13]")
    PF = lambda p: 16 + 4 * p
    for p in range(9):
        for hh in range(2):
            u = 2 * p + hh
            if u <= 16:
                k(f"v_cvt_pk_bf16_f32 v{PF(p)+2*hh}, v{S(u)}, v{S(u)+1}")
                k(f"v_cvt_pk_bf16_f32 v{PF(p)+2*hh+1}, v{S(u)+2}, v{S(u)+3}")
            else:
                k(f"v_mov_b32 v{PF(p)+2*hh}, 0"); k(f"v_mov_b32 v{PF(p)+2*hh+1}, 0")
    k("s_waitcnt vmcnt(0)")
    for p in range(9):
        for t in range(2):
            c = v(60 + 4 * t, 4)
            k(f"v_mfma_f32_16x16x32_bf16 {c}, {v(VF(t,p),4)}, {v(PF(p),4)}, {c if p else '0'}")
    k("v_mul_u32_u24 v5, 1152, v3")
    k("v_lshl_add_u32 v5, v4, 3, v5")
    k("s_mul_i32 s22, s21, 36"); k("s_mul_i32 s23, s20, 18432"); k("s_add_u32 s22, s22, s23")
    k(f"s_add_u32 s22, s22, {WS_OB}")
    k("v_cvt_pk_bf16_f32 v60, v60, v61"); k("v_cvt_pk_bf16_f32 v61, v62, v63")
    k("v_cvt_pk_bf16_f32 v64, v64, v65")
    k("buffer_store_dwordx2 v[60:61], v5, s[16:19], s22 offen")
    k("s_mov_b64 exec, 0xffff")
    k("buffer_store_dword v64, v5, s[16:19], s22 offen offset:32")
    k.label(Lend)
    k("s_endpgm")
    return name, 232
```

```python
from common import *

L_W = 0
L_MEM = 147456
MEM_STR = 1168
L_SC = L_MEM + 8 * MEM_STR
L_SPARE = L_SC + 6144
XCH_INBOX = WS_XCH
INBOX_PAR = 1 << 20
XCH_MEMSLOT = WS_XCH + 2 * INBOX_PAR

def Qf(ks, t):
    return a((2 * ks + t) * 4, 4)
def Kf(ks, t):
    i = 2 * ks + t
    if i < 28: return a(144 + i * 4, 4)
    return v(80 + (i - 28) * 4, 4)
def Wof(T, ks):
    return v(112 + (T * 4 + ks) * 4, 4)
def half(reg, hh):
    kind = reg[0]; lo = int(reg[2:reg.index(':')])
    return f"{kind}[{lo+2*hh}:{lo+2*hh+1}]"

def gen_chain(k, worker=None, prof=False):
    name = "chain_kernel"
    def stamp(i):
        if not prof: return
        k("s_memtime s[60:61]")
        k("s_waitcnt lgkmcnt(0)")
        k("s_sub_u32 s62, s60, s63")
        k(f"s_add_u32 s{92+i}, s{92+i}, s62")
        k("s_mov_b32 s63, s60")
    kernel_begin(k, name)
    Lend = k.newlabel('Lend')
    k("s_cmp_ge_u32 s2, 256")
    k.branch(f"s_cbranch_scc1 {Lend}")
    load_kernargs(k)
    make_srd(k, 12, P_DBG, 256)
    make_srd(k, 16, P_WS, WS_BYTES)
    make_srd(k, 20, P_MEM0, 9216)
    k("v_lshrrev_b32 v1, 6, v0")
    k("v_readfirstlane_b32 s25, v1")
    k("s_mov_b32 s36, 0x00ff00ff"); k("s_mov_b32 s37, 0x00ff00ff")
    k("s_mov_b32 s38, -1"); k("s_mov_b32 s39, 0")
    k("s_mov_b32 s42, -1"); k("s_mov_b32 s43, 0xffff")
    k("s_mov_b32 s46, 0x3e0293ee")
    k("s_mov_b32 s47, 0x3e0293ee")
    Lr_done = k.newlabel('Lrd'); Lr_store = k.newlabel('Lrs'); Lr_poll = k.newlabel('Lrp'); Lr_nocas = k.newlabel('Lrn')
    k("s_cmp_lg_u32 s25, 0")
    k.branch(f"s_cbranch_scc1 {Lr_done}")
    k("s_mov_b64 exec, 1")
    k("s_getreg_b32 s4, hwreg(HW_REG_XCC_ID)")
    k("s_and_b32 s4, s4, 7")
    k("s_lshl_b32 s5, s4, 2")
    k("v_mov_b32 v1, s5")
    k("v_mov_b32 v2, 1")
    k("buffer_atomic_add v2, v1, s[12:15], 0 offen sc0")
    k("s_waitcnt vmcnt(0)")
    k("v_readfirstlane_b32 s5, v2")
    k("s_mov_b32 s24, -1")
    k("s_cmp_ge_u32 s5, 32")
    k.branch(f"s_cbranch_scc1 {Lr_store}")
    k("s_add_u32 s6, s4, 1")
    k("s_cmp_lg_u32 s5, 31")
    k.branch(f"s_cbranch_scc1 {Lr_nocas}")
    k("v_mov_b32 v2, s6"); k("v_mov_b32 v3, 0"); k("v_mov_b32 v1, 32")
    k("buffer_atomic_cmpswap v[2:3], v1, s[12:15], 0 offen sc0")
    k("s_waitcnt vmcnt(0)")
    k.label(Lr_nocas)
    k("s_mov_b32 s44, 0")
    k("v_mov_b32 v1, 32")
    k.label(Lr_poll)
    k("buffer_load_dword v2, v1, s[12:15], 0 offen sc1")
    k("s_waitcnt vmcnt(0)")
    k("v_readfirstlane_b32 s7, v2")
    k("s_add_u32 s44, s44, 1")
    k("s_cmp_gt_u32 s44, 0x400000")
    k.branch(f"s_cbranch_scc1 {Lr_store}")
    k("s_cmp_eq_u32 s7, 0")
    k.branch(f"s_cbranch_scc1 {Lr_poll}")
    k("s_cmp_eq_u32 s7, s6")
    k("s_cselect_b32 s24, s5, -1")
    k.label(Lr_store)
    k("v_mov_b32 v1, s24")
    k(f"v_mov_b32 v2, {L_SPARE}")
    k("ds_write_b32 v2, v1")
    k("s_waitcnt lgkmcnt(0)")
    k("s_mov_b64 exec, -1")
    k.label(Lr_done)
    k("s_barrier")
    k(f"v_mov_b32 v2, {L_SPARE}")
    k("ds_read_b32 v1, v2")
    k("s_waitcnt lgkmcnt(0)")
    k("v_readfirstlane_b32 s24, v1")
    k("s_cmp_lt_i32 s24, 0")
    k.branch(f"s_cbranch_scc1 {Lend if worker is None else worker}")
    if prof:
        for i in range(10): k(f"s_mov_b32 s{92+i}, 0")
        k("s_memtime s[60:61]"); k("s_waitcnt lgkmcnt(0)"); k("s_mov_b32 s63, s60")
    k("s_mov_b32 s40, -1")
    k("s_cmp_lt_u32 s24, 4")
    k("s_cselect_b32 s41, -1, 0")
    for r in range(4): k(f"v_mov_b32 v{16+r}, -1")
    k("s_lshl_b32 s4, s24, 15")
    k("v_lshlrev_b32 v1, 4, v0")
    k("v_add_u32 v1, s4, v1")
    for p in range(2):
        for j in range(8):
            k(f"s_mov_b32 s5, {XCH_INBOX + p * INBOX_PAR + j * 4096}")
            k(f"buffer_store_dwordx4 v[16:19], v1, s[16:19], s5 offen")
    def pub_voff(d, tmp):
        k(f"v_mbcnt_lo_u32_b32 v{tmp}, -1, 0")
        k(f"v_mbcnt_hi_u32_b32 v{tmp}, -1, v{tmp}")
        k(f"v_lshrrev_b32 v{d}, 5, v{tmp}")
        k(f"v_lshlrev_b32 v{d}, 13, v{d}")
        k(f"v_and_b32 v{tmp}, 31, v{tmp}")
        k(f"v_lshl_add_u32 v{d}, v{tmp}, 3, v{d}")
        k(f"v_add_u32 v{d}, s48, v{d}")
    k("s_lshl_b32 s48, s24, 8")
    pub_voff(1, 2)
    k("s_mov_b64 exec, s[40:41]")
    for q in range(3):
        k(f"s_mov_b32 s5, {XCH_MEMSLOT + q * 9216}")
        k(f"buffer_store_dwordx2 v[16:17], v1, s[16:19], s5 offen")
    k("s_mov_b64 exec, -1")
    k("s_waitcnt vmcnt(0)")
    k("s_barrier")
    Lnr = k.newlabel('Lnr')
    k("s_cmp_lg_u32 s25, 0")
    k.branch(f"s_cbranch_scc1 {Lnr}")
    k("s_mov_b64 exec, 1")
    k("v_mov_b32 v1, 36"); k("v_mov_b32 v2, 1")
    k("buffer_atomic_add v2, v1, s[12:15], 0 offen")
    k("s_mov_b64 exec, -1")
    k.label(Lnr)
    k("v_lshrrev_b32 v1, 4, v0")
    k("v_and_b32 v2, 15, v0")
    k("v_and_b32 v3, 3, v1")
    k("v_bfe_u32 v6, v1, 3, 1")
    k("v_lshl_add_u32 v3, v6, 2, v3")
    k("v_lshrrev_b32 v6, 1, v2")
    k("v_xor_b32 v3, v3, v6")
    k("v_lshlrev_b32 v3, 5, v3")
    k("v_and_b32 v6, 1, v2")
    k("v_lshl_add_u32 v3, v6, 4, v3")
    k("v_lshl_add_u32 v4, v1, 8, v3")
    k("v_lshlrev_b32 v5, 13, v1")
    k("v_lshl_add_u32 v5, v2, 4, v5")
    k("s_lshl_b32 s4, s24, 8")
    k("v_add_u32 v5, s4, v5")
    k("v_bfe_u32 v6, v0, 4, 2")
    k("v_bfe_u32 v7, v0, 2, 2")
    k("v_and_b32 v8, 1, v6")
    k("v_lshl_add_u32 v8, v8, 2, v7")
    k("v_lshl_add_u32 v9, v6, 3, v7")
    k("v_lshlrev_b32 v9, 8, v9")
    k("v_and_b32 v10, 3, v0")
    k("v_lshl_add_u32 v9, v10, 3, v9")
    k("s_lshl_b32 s4, s25, 1")
    for t in range(2):
        k(f"s_add_u32 s5, s4, {t}")
        k(f"v_xor_b32 v10, s5, v8")
        k(f"v_lshl_add_u32 v{1+t}, v10, 5, v9")
    def stage_qkv(P, stg, nbatch_regs):
        make_srd(k, 8, P, 576 * 8192)
        k("v_mov_b32 v11, v5")
        k("v_mov_b32 v12, v4")
        j = 0
        while j < 36:
            nb = min(nbatch_regs, 36 - j)
            for i in range(nb):
                k(f"buffer_load_dwordx4 {stg(i)}, v11, s[8:11], 0 offen")
                k("v_add_u32 v11, 0x20000, v11")
            for i in range(nb):
                k(f"s_waitcnt vmcnt({nb-1-i})")
                k(f"ds_write_b128 v12, {stg(i)}")
                k("v_add_u32 v12, 0x1000, v12")
            j += nb
        k("s_waitcnt lgkmcnt(0)")
        k("s_barrier")
    def read_qkv_frags(dst):
        k("v_mov_b32 v11, v1"); k("v_mov_b32 v12, v2")
        for ks in range(18):
            for t in range(2):
                for hh in range(2):
                    k(f"ds_read_b64_tr_b16 {half(dst(ks,t),hh)}, v{11+t} offset:{(ks%8)*8192 + hh*1024}")
            if ks % 8 == 7:
                k("v_add_u32 v11, 0x10000, v11"); k("v_add_u32 v12, 0x10000, v12")
        k("s_waitcnt lgkmcnt(0)")
        k("s_barrier")
    stgW = lambda i: v(112 + 4 * i, 4)
    stage_qkv(P_WQ, stgW, 36); read_qkv_frags(Qf)
    stage_qkv(P_WK, stgW, 36); read_qkv_frags(Kf)
    make_srd(k, 8, P_WO, 4096 * 1152)
    k("s_mul_i32 s4, s24, 147456")
    k("v_lshlrev_b32 v11, 4, v0")
    k("v_mov_b32 v12, v11")
    k("v_add_u32 v11, s4, v11")
    for i in range(36):
        k(f"buffer_load_dwordx4 {stgW(i)}, v11, s[8:11], 0 offen")
        k("v_add_u32 v11, 0x1000, v11")
    for i in range(36):
        k(f"s_waitcnt vmcnt({35-i})")
        k(f"ds_write_b128 v12, {stgW(i)}")
        k("v_add_u32 v12, 0x1000, v12")
    k("s_waitcnt lgkmcnt(0)")
    k("s_barrier")
    k("v_bfe_u32 v6, v0, 4, 2"); k("v_bfe_u32 v7, v0, 2, 2")
    k("v_lshl_add_u32 v9, v6, 2, v7")
    k("v_mul_u32_u24 v9, 1152, v9")
    k("v_and_b32 v10, 3, v0")
    k("v_lshl_add_u32 v9, v10, 3, v9")
    k("s_mul_i32 s4, s25, 288")
    k("v_add_u32 v11, s4, v9")
    for ks in range(4):
        for T in range(9):
            for hh in range(2):
                k(f"ds_read_b64_tr_b16 {half(Wof(T,ks),hh)}, v11 offset:{hh*16*1152 + T*32}")
        k(f"v_add_u32 v11, {32*1152}, v11")
    k("s_waitcnt lgkmcnt(0)")
    k("s_barrier")
    stage_qkv(P_WV, lambda i: v(16 + 4 * i, 4), 16)
    k("v_mbcnt_lo_u32_b32 v12, -1, 0")
    k("v_mbcnt_hi_u32_b32 v12, -1, v12")
    k("v_and_b32 v13, 15, v12")
    k("v_lshrrev_b32 v14, 4, v12")
    k("v_and_b32 v15, 7, v12")
    k("s_mul_i32 s4, s25, 9")
    k("v_mul_u32_u24 v16, 3, v14")
    k("v_add_u32 v16, s4, v16")
    k("v_lshlrev_b32 v11, 8, v16")
    k("v_lshl_add_u32 v11, v13, 4, v11")
    k("v_lshrrev_b32 v17, 1, v13")
    k("v_and_b32 v18, 1, v13")
    k("v_lshlrev_b32 v19, 5, v16")
    k("v_lshl_add_u32 v19, v18, 4, v19")
    k(f"v_mul_u32_u24 v4, {MEM_STR}, v17")
    k("v_add_u32 v4, v4, v19")
    k(f"v_add_u32 v4, {L_MEM}, v4")
    k("v_mul_u32_u24 v20, 1152, v17")
    k("v_add_u32 v20, v20, v19")
    k("s_mov_b64 exec, s[42:43]")
    for i in range(3):
        k(f"buffer_load_dwordx4 {v(24+4*i,4)}, v20, s[20:23], 0 offen offset:{32*i}")
    k("s_waitcnt vmcnt(0)")
    for i in range(3):
        k(f"ds_write_b128 v4, {v(24+4*i,4)} offset:{32*i}")
    k("s_mov_b64 exec, -1")
    k(f"v_mul_u32_u24 v0, {MEM_STR}, v15")
    k("v_lshl_add_u32 v0, v14, 4, v0")
    k(f"v_add_u32 v0, {L_MEM}, v0")
    k("v_lshlrev_b32 v3, 4, v12")
    k(f"v_add_u32 v5, {L_MEM}, v3")
    k("s_lshl_b32 s4, s25, 10")
    k("v_add_u32 v6, s4, v5")
    k("v_lshl_add_u32 v8, v14, 3, v15")
    k("v_lshlrev_b32 v8, 4, v8")
    k(f"v_add_u32 v8, {L_SC}, v8")
    k("s_mul_i32 s4, s25, 1536")
    k("v_add_u32 v7, s4, v8")
    k("v_lshl_add_u32 v9, v15, 2, v14")
    k("v_lshlrev_b32 v9, 4, v9")
    k("s_lshl_b32 s4, s24, 9")
    k("v_add_u32 v9, s4, v9")
    k("v_lshrrev_b32 v10, 5, v12")
    k("v_lshlrev_b32 v10, 14, v10")
    k("v_and_b32 v16, 31, v12")
    k("v_lshl_add_u32 v10, v16, 4, v10")
    k("s_lshl_b32 s4, s24, 15"); k("s_lshl_b32 s5, s25, 12"); k("s_add_u32 s4, s4, s5")
    k("v_add_u32 v10, s4, v10")
    for T in range(9):
        k(f"s_mul_i32 s4, s25, 9"); k(f"s_add_u32 s4, s4, {T}")
        k("s_lshl_b32 s5, s4, 15")
        k(f"s_sub_u32 s6, s5, {32*32768 - 16384}")
        k("s_cmp_lt_u32 s4, 32")
        k("s_cselect_b32 s5, s5, s6")
        k(f"s_add_u32 s{50+T}, s5, {XCH_INBOX}")
    k("s_mov_b32 s26, 0")
    k("s_lshl_b32 s4, s24, 2"); k("s_add_u32 s4, s4, s25"); k("s_lshl_b32 s4, s4, 10")
    k(f"s_add_u32 s27, s4, {WS_KX}"); k(f"s_add_u32 s28, s27, {128*1024}")
    k("s_lshl_b32 s5, s4, 1")
    k(f"s_add_u32 s29, s5, {WS_VT}")
    k("s_lshr_b32 s5, s4, 1")
    k(f"s_add_u32 s31, s5, {WS_KM - L_SC}"); k(f"s_add_u32 s32, s5, {WS_VMT}")
    k(f"s_mov_b32 s33, {XCH_INBOX}")
    k(f"s_mov_b32 s34, {XCH_MEMSLOT}"); k(f"s_mov_b32 s35, {XCH_MEMSLOT + 9216}"); k(f"s_mov_b32 s30, {XCH_MEMSLOT + 2*9216}")
    def prefetch_kv():
        k("buffer_load_dwordx4 v[64:67], v3, s[16:19], s27 offen")
        k("buffer_load_dwordx4 v[68:71], v3, s[16:19], s28 offen")
        k("buffer_load_dwordx4 v[72:75], v3, s[16:19], s29 offen")
        k("buffer_load_dwordx4 v[76:79], v3, s[16:19], s29 offen offset:1024")
        k(f"s_add_u32 s27, s27, {256*1024}"); k(f"s_add_u32 s28, s28, {256*1024}")
        k(f"s_add_u32 s29, s29, {256*1024}")
    prefetch_kv()
    Lrw = k.newlabel('Lrw'); Lrw2 = k.newlabel('Lrw2')
    k("s_mov_b32 s44, 0")
    k("v_mov_b32 v12, 36")
    k.label(Lrw)
    k("buffer_load_dword v13, v12, s[12:15], 0 offen sc1")
    k("s_waitcnt vmcnt(0)")
    k("v_readfirstlane_b32 s4, v13")
    k("s_add_u32 s44, s44, 1")
    k("s_cmp_gt_u32 s44, 0x400000")
    k.branch(f"s_cbranch_scc1 {Lrw2}")
    k("s_cmp_lt_u32 s4, 32")
    k.branch(f"s_cbranch_scc1 {Lrw}")
    k.label(Lrw2)
    k("s_waitcnt lgkmcnt(0)")
    k("s_barrier")
    stamp(0)
    Lstep = k.newlabel('Lstep')
    k.label(Lstep)
    MFR = [40, 44, 12]
    MF = lambda ks: MFR[ks % 3]
    VF = lambda ks, t: 48 + 8 * (ks & 1) + 4 * t
    def mread(ks):
        k(f"ds_read_b128 {v(MF(ks),4)}, v0 offset:{ks*64}")
    def vread(ks):
        for t in range(2):
            for hh in range(2):
                k(f"ds_read_b64_tr_b16 {v(VF(ks,t)+2*hh,2)}, v{1+t} offset:{(ks%8)*8192 + hh*1024}")
        if ks % 8 == 7:
            k("v_add_u32 v1, 0x10000, v1"); k("v_add_u32 v2, 0x10000, v2")
    q = []
    def issue(tag, n):
        q.extend([tag] * n)
    def wait_for(tag):
        idx = max(i for i, t_ in enumerate(q) if t_ == tag)
        n_after = len(q) - 1 - idx
        k(f"s_waitcnt lgkmcnt({min(n_after,15)})")
    mread(0); issue(('m', 0), 1)
    vread(0); issue(('v', 0), 4)
    mread(1); issue(('m', 1), 1)
    for ks in range(18):
        if ks + 2 < 18:
            mread(ks + 2); issue(('m', ks + 2), 1)
        if ks + 1 < 18:
            vread(ks + 1); issue(('v', ks + 1), 4)
        wait_for(('m', ks))
        mf = v(MF(ks), 4)
        C = lambda r: (v(r, 4) if ks else "0")
        k(f"v_mfma_f32_16x16x32_bf16 v[16:19], {Qf(ks,0)}, {mf}, {C(16)}")
        k(f"v_mfma_f32_16x16x32_bf16 v[20:23], {Qf(ks,1)}, {mf}, {C(20)}")
        k(f"v_mfma_f32_16x16x32_bf16 v[24:27], {Kf(ks,0)}, {mf}, {C(24)}")
        k(f"v_mfma_f32_16x16x32_bf16 v[28:31], {Kf(ks,1)}, {mf}, {C(28)}")
        wait_for(('v', ks))
        k(f"v_mfma_f32_16x16x32_bf16 v[32:35], {mf}, {v(VF(ks,0),4)}, {C(32)}")
        k(f"v_mfma_f32_16x16x32_bf16 v[36:39], {mf}, {v(VF(ks,1),4)}, {C(36)}")
    k("v_add_u32 v1, 0xfffe0000, v1"); k("v_add_u32 v2, 0xfffe0000, v2")
    stamp(1)
    k("v_cvt_pk_bf16_f32 v16, v16, v17"); k("v_cvt_pk_bf16_f32 v17, v18, v19")
    k("v_cvt_pk_bf16_f32 v18, v20, v21"); k("v_cvt_pk_bf16_f32 v19, v22, v23")
    k("v_cvt_pk_bf16_f32 v24, v24, v25"); k("v_cvt_pk_bf16_f32 v25, v26, v27")
    k("v_cvt_pk_bf16_f32 v26, v28, v29"); k("v_cvt_pk_bf16_f32 v27, v30, v31")
    k("s_waitcnt vmcnt(0)")
    k("v_mfma_f32_16x16x32_bf16 v[40:43], v[64:67], v[16:19], 0")
    k("v_mfma_f32_16x16x32_bf16 v[44:47], v[68:71], v[16:19], 0")
    k("v_mfma_f32_16x16x32_bf16 v[48:51], v[24:27], v[16:19], 0")
    k("v_cvt_pk_bf16_f32 v32, v32, v33"); k("v_cvt_pk_bf16_f32 v33, v34, v35")
    k("v_cvt_pk_bf16_f32 v34, v36, v37"); k("v_cvt_pk_bf16_f32 v35, v38, v39")
    k("s_mov_b64 exec, s[36:37]")
    for tt in range(3):
        k(f"ds_write_b128 v7, {v(40+4*tt,4)} offset:{tt*512}")
    k("buffer_store_dwordx4 v[24:27], v8, s[16:19], s31 offen")
    k("s_mov_b64 exec, s[38:39]")
    k("buffer_store_dwordx4 v[32:35], v3, s[16:19], s32 offen")
    k("s_mov_b64 exec, -1")
    k("s_add_u32 s31, s31, 65536"); k("s_add_u32 s32, s32, 65536")
    k("s_cmp_eq_u32 s26, 63")
    Lfin = k.newlabel('Lfin')
    k.branch(f"s_cbranch_scc1 {Lfin if prof else Lend}")
    k("s_waitcnt lgkmcnt(0)")
    k("s_barrier")
    stamp(2)
    dst = [[40, 44, 48], [52, 56, 60], [20, 28, 36], [64, 68, 12]]
    for u in range(4):
        for tt in range(3):
            k(f"ds_read_b128 {v(dst[u][tt],4)}, v8 offset:{u*1536 + tt*512}")
    def pk(op, d, x, y):
        k(f"{op} {v(d,2)}, {v(x,2)}, {v(y,2)}")
    k("s_waitcnt lgkmcnt(6)")
    for tt in range(3):
        for r in (0, 2): pk("v_pk_add_f32", 40+4*tt+r, 40+4*tt+r, dst[1][tt]+r)
    k("s_waitcnt lgkmcnt(0)")
    for tt in range(3):
        for r in (0, 2): pk("v_pk_add_f32", dst[2][tt]+r, dst[2][tt]+r, dst[3][tt]+r)
    for tt in range(3):
        for r in (0, 2): pk("v_pk_add_f32", 40+4*tt+r, 40+4*tt+r, dst[2][tt]+r)
    k("v_max3_f32 v52, v40, v41, v42"); k("v_max3_f32 v53, v43, v44, v45")
    k("v_max3_f32 v54, v46, v47, v48"); k("v_max3_f32 v55, v49, v50, v51")
    k("v_max3_f32 v52, v52, v53, v54"); k("v_max_f32 v52, v52, v55")
    def xlane(op):
        k("v_mov_b32 v53, v52"); k("v_permlane16_swap_b32 v52, v53"); k(f"{op} v52, v52, v53")
        k("v_mov_b32 v53, v52"); k("v_permlane32_swap_b32 v52, v53"); k(f"{op} v52, v52, v53")
    xlane("v_max_f32")
    k("v_mul_f32 v54, s46, v52")
    k("v_sub_f32 v54, 0, v54")
    k("v_mov_b32 v55, v54")
    for i in range(40, 52, 2): k(f"v_pk_fma_f32 {v(i,2)}, {v(i,2)}, s[46:47], v[54:55]")
    for i in range(40, 52): k(f"v_exp_f32 v{i}, v{i}")
    k("v_cndmask_b32 v57, 0, 1.0, s[38:39]")
    k("v_pk_add_f32 v[52:53], v[40:41], v[42:43]")
    k("v_pk_add_f32 v[54:55], v[44:45], v[46:47]")
    k("v_pk_add_f32 v[58:59], v[48:49], v[50:51]")
    k("v_pk_add_f32 v[52:53], v[52:53], v[54:55]")
    k("v_add_f32 v58, v58, v59")
    k("v_add_f32 v52, v52, v53")
    k("v_fmac_f32 v52, v58, v57")
    xlane("v_add_f32")
    k("v_rcp_f32 v52, v52")
    k("v_mov_b32 v53, v52")
    k("v_mul_f32 v58, v52, v57")
    k("v_mov_b32 v59, v58")
    for i in range(40, 48, 2): k(f"v_pk_mul_f32 {v(i,2)}, {v(i,2)}, v[52:53]")
    for i in range(48, 52, 2): k(f"v_pk_mul_f32 {v(i,2)}, {v(i,2)}, v[58:59]")
    for j in range(6): k(f"v_cvt_pk_bf16_f32 v{52+j}, v{40+2*j}, v{41+2*j}")
    k("v_mfma_f32_16x16x32_bf16 v[20:23], v[72:75], v[52:55], 0")
    k("v_mfma_f32_16x16x32_bf16 v[28:31], v[76:79], v[52:55], 0")
    k("v_mfma_f32_16x16x16_bf16 v[20:23], v[32:33], v[56:57], v[20:23]")
    k("v_mfma_f32_16x16x16_bf16 v[28:31], v[34:35], v[56:57], v[28:31]")
    stamp(3)
    k("s_barrier")
    k("v_cvt_pk_bf16_f32 v36, v20, v21"); k("v_cvt_pk_bf16_f32 v37, v22, v23")
    k("v_cvt_pk_bf16_f32 v38, v28, v29"); k("v_cvt_pk_bf16_f32 v39, v30, v31")
    k("s_mov_b64 exec, s[36:37]")
    k("ds_write_b128 v7, v[36:39]")
    k("s_mov_b64 exec, -1")
    k("s_waitcnt lgkmcnt(0)")
    k("s_barrier")
    for ks in range(4):
        k(f"ds_read_b128 {v(40+4*ks,4)}, v8 offset:{ks*1536}")
    OACC = [16, 20, 24, 28, 32, 36, 56, 60, 12]
    k("s_waitcnt lgkmcnt(0)")
    stamp(4)
    for T in range(9):
        for ks in range(4):
            c = v(OACC[T], 4)
            k(f"v_mfma_f32_16x16x32_bf16 {c}, {Wof(T,ks)}, {v(40+4*ks,4)}, {c if ks else '0'}")
    stamp(5)
    k("s_mov_b64 exec, s[36:37]")
    for T in range(9):
        k(f"buffer_store_dwordx4 {v(OACC[T],4)}, v9, s[16:19], s{50+T} offen")
    k("s_mov_b64 exec, -1")
    prefetch_kv()
    for T in range(9):
        k(f"s_xor_b32 s{50+T}, s{50+T}, {INBOX_PAR}")
    stamp(6)
    k("s_mov_b64 exec, s[40:41]")
    k("s_mov_b32 s44, 0")
    Lp1 = k.newlabel('Lp1'); Lp1d = k.newlabel('Lp1d')
    k.label(Lp1)
    for i in range(8):
        k(f"buffer_load_dwordx4 {v(16+4*i,4)}, v10, s[16:19], s33 offen offset:{i*512} sc1")
    k("s_waitcnt vmcnt(0)")
    k("v_max3_u32 v48, v16, v17, v18")
    k("v_max3_u32 v49, v19, v20, v21")
    for i in range(22, 46, 4):
        k(f"v_max3_u32 v48, v48, v{i}, v{i+1}")
        k(f"v_max3_u32 v49, v49, v{i+2}, v{i+3}")
    k("v_max3_u32 v48, v48, v46, v47")
    k("v_max_u32 v48, v48, v49")
    k("v_cmp_eq_u32 vcc, -1, v48")
    k.branch(f"s_cbranch_vccz {Lp1d}")
    k("s_add_u32 s44, s44, 1")
    k("s_cmp_lt_u32 s44, 0x100000")
    k.branch(f"s_cbranch_scc1 {Lp1}")
    k.label(Lp1d)
    stamp(7)
    for i in (0, 2, 4, 6):
        for r in (0, 2): pk("v_pk_add_f32", 16+4*i+r, 16+4*i+r, 20+4*i+r)
    for r in (0, 2):
        pk("v_pk_add_f32", 16+r, 16+r, 24+r); pk("v_pk_add_f32", 32+r, 32+r, 40+r)
    for r in (0, 2): pk("v_pk_add_f32", 16+r, 16+r, 32+r)
    k("ds_write_b128 v6, v[16:19]")
    for r in range(4): k(f"v_mov_b32 v{48+r}, -1")
    for i in range(8):
        k(f"buffer_store_dwordx4 v[48:51], v10, s[16:19], s33 offen offset:{i*512}")
    k("s_mov_b64 exec, -1")
    k("s_waitcnt lgkmcnt(0)")
    k("s_barrier")
    Lnp = k.newlabel('Lnp')
    k("s_cmp_lg_u32 s25, 0")
    k.branch(f"s_cbranch_scc1 {Lnp}")
    k("s_mov_b64 exec, s[40:41]")
    for u in range(4):
        k(f"ds_read_b128 {v(16+4*u,4)}, v5 offset:{u*1024}")
    pub_voff(14, 12)
    k("v_mov_b32 v22, 0x7fc07fc0") if False else None
    k("v_mov_b32 v36, 0x7fc07fc0")
    k("s_waitcnt lgkmcnt(0)")
    for r in (0, 2):
        pk("v_pk_add_f32", 16+r, 16+r, 20+r); pk("v_pk_add_f32", 24+r, 24+r, 28+r)
    for r in (0, 2): pk("v_pk_add_f32", 16+r, 16+r, 24+r)
    k("v_cvt_pk_bf16_f32 v20, v16, v17"); k("v_cvt_pk_bf16_f32 v21, v18, v19")
    k("v_cmp_eq_u32 vcc, -1, v20")
    k("v_cmp_eq_u32 s[6:7], -1, v21")
    k("v_cndmask_b32 v20, v20, v36, vcc")
    k("v_cndmask_b32 v21, v21, v36, s[6:7]")
    k("buffer_store_dwordx2 v[20:21], v14, s[16:19], s34 offen")
    k("buffer_store_dwordx2 v[48:49], v14, s[16:19], s30 offen")
    k("s_mov_b64 exec, -1")
    k.label(Lnp)
    stamp(8)
    k("s_mov_b64 exec, s[42:43]")
    k("s_mov_b32 s44, 0")
    Lp2 = k.newlabel('Lp2'); Lp2d = k.newlabel('Lp2d')
    k.label(Lp2)
    for i in range(3):
        k(f"buffer_load_dwordx4 {v(16+4*i,4)}, v11, s[16:19], s34 offen offset:{256*i} sc1")
    k("s_waitcnt vmcnt(0)")
    k("v_max3_u32 v48, v16, v17, v18")
    k("v_max3_u32 v49, v19, v20, v21")
    k("v_max3_u32 v48, v48, v22, v23")
    k("v_max3_u32 v49, v49, v24, v25")
    k("v_max3_u32 v48, v48, v26, v27")
    k("v_max_u32 v48, v48, v49")
    k("v_cmp_eq_u32 vcc, -1, v48")
    k.branch(f"s_cbranch_vccz {Lp2d}")
    k("s_add_u32 s44, s44, 1")
    k("s_cmp_lt_u32 s44, 0x100000")
    k.branch(f"s_cbranch_scc1 {Lp2}")
    k.label(Lp2d)
    for i in range(3):
        k(f"ds_write_b128 v4, {v(16+4*i,4)} offset:{32*i}")
    k("s_mov_b64 exec, -1")
    k(f"s_xor_b32 s33, s33, {INBOX_PAR}")
    k("s_mov_b32 s4, s30"); k("s_mov_b32 s30, s34"); k("s_mov_b32 s34, s35"); k("s_mov_b32 s35, s4")
    k("s_add_u32 s26, s26, 1")
    k("s_waitcnt lgkmcnt(0)")
    k("s_barrier")
    stamp(9)
    k.branch(f"s_branch {Lstep}")
    if prof:
        k.label(Lfin)
        k("s_or_b32 s4, s24, s25")
        k("s_cmp_lg_u32 s4, 0")
        k.branch(f"s_cbranch_scc1 {Lend}")
        k("s_mov_b64 exec, 1")
        for i in range(10):
            k(f"v_mov_b32 v12, s{92+i}"); k(f"v_mov_b32 v13, {64+4*i}")
            k("buffer_store_dword v12, v13, s[12:15], 0 offen")
    k.label(Lend)
    k("s_endpgm")
    return name
```

```python
from common import *
from gemm import Gemm
from k_attna import rnd_pairs

def gen_final(k, BM=128, BN=64):
    name = "final_kernel"
    kernel_begin(k, name)
    NBLK = 576 // BN
    MB = 2048 // BM
    ntiles = NBLK * MB
    g = Gemm(k, BM, BN, vbase=8, acc0=0)
    nacc = g.MT * g.NT * 4
    Lend = k.newlabel('Lend')
    k(f"s_cmp_ge_u32 s2, {ntiles}")
    k.branch(f"s_cbranch_scc1 {Lend}")
    k(f"s_mov_b32 s4, {(1<<32)//NBLK + 1}")
    k("s_mul_hi_u32 s5, s2, s4")
    k(f"s_mul_i32 s6, s5, {NBLK}")
    k("s_sub_u32 s6, s2, s6")
    load_kernargs(k)
    make_srd(k, 16, P_WS, WS_BYTES)
    make_srd(k, 12, P_WO, 4096 * 1152)
    make_srd(k, 8, P_WOB, 576 * 1152)
    make_srd(k, 36, P_OUT, 2048 * 1152)
    g.setup_lds_addrs()
    k("s_mov_b32 s20, 1152")
    k(f"s_mul_i32 s21, s6, {BN*2}")
    k(f"s_mul_i32 s27, s5, {BM*8192}")
    k(f"s_add_u32 s27, s27, {WS_OA}")
    k("s_mov_b32 s28, 8192")
    k(f"s_mov_b32 s29, {1152*64}")
    k("s_mov_b32 s30, 0"); k("s_mov_b32 s31, 0")
    g.setup_global(28, 27, 20, 21)
    g.zero_acc()
    g.run(4096, 0, 16, 12, 30, 31, 29, s_cnt=32, first_barrier=False)
    g.acc0 = nacc
    k(f"s_mul_i32 s27, s5, {BM*1152}")
    k(f"s_add_u32 s27, s27, {WS_OB}")
    k("s_mov_b32 s28, 1152")
    k("s_mov_b32 s30, 0"); k("s_mov_b32 s31, 0")
    g.setup_global(28, 27, 20, 21)
    g.zero_acc()
    g.run(576, 0, 16, 8, 30, 31, 29, first_barrier=True)
    t = g.vtmp
    k(f"v_lshrrev_b32 v{t}, 7, v0")
    k(f"v_mul_u32_u24 v{t}, {g.WM}, v{t}")
    k(f"v_and_b32 v{t+1}, 15, v0")
    k(f"v_add_u32 v{t}, v{t}, v{t+1}")
    k(f"s_mul_i32 s27, s5, {BM}")
    k(f"v_add_u32 v{t}, s27, v{t}")
    k(f"v_lshlrev_b32 v{t+3}, 2, v{t}")
    G = g.SA
    k(f"s_mov_b32 s27, {WS_GATE}")
    for i in range(g.MT):
        k(f"buffer_load_dword v{G+i}, v{t+3}, s[16:19], s27 offen offset:{i*64}")
    k(f"v_mul_u32_u24 v{t}, 1152, v{t}")
    k(f"v_bfe_u32 v{t+1}, v0, 6, 1")
    k(f"v_mul_u32_u24 v{t+1}, {g.WN}, v{t+1}")
    k(f"v_bfe_u32 v{t+2}, v0, 4, 2")
    k(f"v_lshl_add_u32 v{t+1}, v{t+2}, 2, v{t+1}")
    k(f"v_lshl_add_u32 v{t}, v{t+1}, 1, v{t}")
    k(f"v_add_u32 v{t}, s21, v{t}")
    k("s_waitcnt vmcnt(0)")
    q = g.FA
    for i in range(g.MT):
        k(f"v_sub_f32 v{q+16}, 1.0, v{G+i}")
        k(f"v_mov_b32 v{q+17}, v{q+16}")
        rnd_pairs(k, [q+16, q+17], q+18)
        for j in range(g.NT):
            ca = (i * g.NT + j) * 4; cb = nacc + ca
            for r in range(4):
                k(f"v_accvgpr_read_b32 v{q+r}, a{ca+r}")
                k(f"v_accvgpr_read_b32 v{q+4+r}, a{cb+r}")
            rnd_pairs(k, list(range(q, q+8)), q+18)
            for r in range(4):
                k(f"v_mul_f32 v{q+r}, v{G+i}, v{q+r}")
                k(f"v_mul_f32 v{q+4+r}, v{q+16}, v{q+4+r}")
            rnd_pairs(k, list(range(q, q+8)), q+18)
            for r in range(4):
                k(f"v_add_f32 v{q+r}, v{q+r}, v{q+4+r}")
            k(f"v_cvt_pk_bf16_f32 v{q+8}, v{q}, v{q+1}")
            k(f"v_cvt_pk_bf16_f32 v{q+9}, v{q+2}, v{q+3}")
            k(f"buffer_store_dwordx2 {v(q+8,2)}, v{t}, s[36:39], 0 offen offset:{j*32}")
        if i + 1 < g.MT:
            k(f"v_add_u32 v{t}, {16*1152}, v{t}")
    k.label(Lend)
    k("s_endpgm")
    return name, g, ntiles, 2 * nacc
```

```python
from common import *
from gemm import Gemm

def gen_proj(k, BM=128, BN=128):
    name = "proj_kernel"
    kernel_begin(k, name)
    NB = 96 + 14
    NBP = 112
    MB = 2048 // BM
    ntiles = NBP * MB
    g = Gemm(k, BM, BN, vbase=8, acc0=0)
    Lend = k.newlabel('Lend')
    k(f"s_cmp_ge_u32 s2, {ntiles}")
    k.branch(f"s_cbranch_scc1 {Lend}")
    k(f"s_mov_b32 s4, {(1<<32)//NBP + 1}")
    k("s_mul_hi_u32 s5, s2, s4")
    k(f"s_mul_i32 s6, s5, {NBP}")
    k("s_sub_u32 s6, s2, s6")
    k(f"s_cmp_ge_u32 s6, {NB}")
    k.branch(f"s_cbranch_scc1 {Lend}")
    load_kernargs(k)
    make_srd(k, 8, P_X, 2048 * 576 * 2)
    make_srd(k, 16, P_WS, WS_BYTES)
    Lq, Lk, Lv, Lb, Ldone = [k.newlabel('Lsel') for _ in range(5)]
    k("s_cmp_lt_u32 s6, 32"); k.branch(f"s_cbranch_scc1 {Lq}")
    k("s_cmp_lt_u32 s6, 64"); k.branch(f"s_cbranch_scc1 {Lk}")
    k("s_cmp_lt_u32 s6, 96"); k.branch(f"s_cbranch_scc1 {Lv}")
    k.branch(f"s_branch {Lb}")
    for L, P, nb0, dst, var in ((Lq, P_WQ, 0, WS_QX, 0), (Lk, P_WK, 32, WS_KX, 0), (Lv, P_WV, 64, WS_VT, 1)):
        k.label(L)
        make_srd(k, 12, P, 576 * 4096 * 2)
        k("s_mov_b32 s20, 8192")
        k(f"s_sub_u32 s21, s6, {nb0}")
        k(f"s_lshl_b32 s25, s21, 7")
        k(f"s_lshl_b32 s21, s21, 8")
        k(f"s_mov_b32 s22, {dst}")
        k(f"s_mov_b32 s23, {8192 if var == 0 else 4096}")
        k(f"s_mov_b32 s24, {var}")
        k(f"s_mov_b32 s26, 4096")
        k("s_mov_b32 s34, 1")
        k.branch(f"s_branch {Ldone}")
    k.label(Lb)
    make_srd(k, 12, P_WQKVB, 576 * 1728 * 2)
    k("s_mov_b32 s20, 3456")
    k("s_sub_u32 s21, s6, 96")
    k("s_lshl_b32 s25, s21, 7")
    k("s_lshl_b32 s21, s21, 8")
    k(f"s_mov_b32 s22, {WS_QKB}")
    k("s_mov_b32 s23, 2304")
    k("s_mov_b32 s24, 0")
    k("s_mov_b32 s26, 1152")
    k("s_mov_b32 s34, 0")
    k("s_cmp_lt_u32 s25, 1152")
    k.branch(f"s_cbranch_scc1 {Ldone}")
    k("s_sub_u32 s25, s25, 1152")
    k(f"s_mov_b32 s22, {WS_VTB}")
    k("s_mov_b32 s23, 4096")
    k("s_mov_b32 s24, 1")
    k("s_mov_b32 s26, 576")
    k.label(Ldone)
    k(f"s_mul_i32 s27, s5, {BM*1152}")
    k("s_mov_b32 s28, 1152")
    k("s_lshl_b32 s29, s20, 6")
    k("s_mov_b32 s30, 0"); k("s_mov_b32 s31, 0")
    g.setup_lds_addrs()
    g.setup_global(28, 27, 20, 21)
    g.zero_acc()
    Lv1 = k.newlabel('Lv1'); Lepi = k.newlabel('Lepi')
    k("s_cmp_eq_u32 s24, 1")
    k.branch(f"s_cbranch_scc1 {Lv1}")
    g.run(576, 0, 8, 12, 30, 31, 29, first_barrier=False)
    t = g.vtmp
    Lf0 = k.newlabel('Lf0')
    k("s_cmp_eq_u32 s34, 1")
    k.branch(f"s_cbranch_scc1 {Lf0}")
    k(f"v_lshrrev_b32 v{t}, 7, v0")
    k(f"v_mul_u32_u24 v{t}, {g.WM}, v{t}")
    k(f"v_and_b32 v{t+1}, 15, v0")
    k(f"v_add_u32 v{t}, v{t}, v{t+1}")
    k(f"s_mul_i32 s27, s5, {BM}")
    k(f"v_add_u32 v{t}, s27, v{t}")
    k(f"v_mul_lo_u32 v{t}, v{t}, s23")
    k(f"v_bfe_u32 v{t+1}, v0, 6, 1")
    k(f"v_mul_u32_u24 v{t+1}, {g.WN}, v{t+1}")
    k(f"v_bfe_u32 v{t+2}, v0, 4, 2")
    k(f"v_lshl_add_u32 v{t+1}, v{t+2}, 2, v{t+1}")
    k(f"v_add_u32 v{t+1}, s25, v{t+1}")
    k(f"v_lshl_add_u32 v{t}, v{t+1}, 1, v{t}")
    k(f"v_add_u32 v{t}, s22, v{t}")
    k(f"s_lshl_b32 s27, s23, 4")
    epi_store(k, g, t, 27, row_i=True)
    k.branch(f"s_branch {Lend}")
    k.label(Lf0)
    k(f"v_lshrrev_b32 v{t}, 7, v0")
    k(f"v_mul_u32_u24 v{t}, {g.MT*128*1024}, v{t}")
    k(f"v_bfe_u32 v{t+1}, v0, 6, 1")
    k(f"v_mul_u32_u24 v{t+1}, {g.NT//2*1024}, v{t+1}")
    k(f"v_add_u32 v{t}, v{t}, v{t+1}")
    k(f"v_and_b32 v{t+1}, 63, v0")
    k(f"v_lshl_add_u32 v{t}, v{t+1}, 4, v{t}")
    k(f"s_mul_i32 s27, s5, {BM//16*128*1024}")
    k("s_lshl_b32 s28, s25, 5")
    k("s_add_u32 s27, s27, s28")
    k("s_add_u32 s27, s27, s22")
    k(f"v_add_u32 v{t}, s27, v{t}")
    epi_frag(k, g, t, pair_j=True)
    k.branch(f"s_branch {Lend}")
    k.label(Lv1)
    g.run(576, 1, 8, 12, 30, 31, 29, first_barrier=False)
    Lf1 = k.newlabel('Lf1')
    k("s_cmp_eq_u32 s34, 1")
    k.branch(f"s_cbranch_scc1 {Lf1}")
    k(f"v_bfe_u32 v{t+1}, v0, 6, 1")
    k(f"v_mul_u32_u24 v{t+1}, {g.WN}, v{t+1}")
    k(f"v_add_u32 v{t+1}, s25, v{t+1}")
    k(f"v_readfirstlane_b32 s27, v{t+1}")
    k("s_cmp_ge_u32 s27, s26")
    k.branch(f"s_cbranch_scc1 {Lend}")
    k(f"v_and_b32 v{t+2}, 15, v0")
    k(f"v_add_u32 v{t+1}, v{t+1}, v{t+2}")
    k(f"v_lshlrev_b32 v{t}, 12, v{t+1}")
    k(f"v_lshrrev_b32 v{t+1}, 7, v0")
    k(f"v_mul_u32_u24 v{t+1}, {g.WM}, v{t+1}")
    k(f"v_bfe_u32 v{t+2}, v0, 4, 2")
    k(f"v_lshl_add_u32 v{t+1}, v{t+2}, 2, v{t+1}")
    k(f"s_mul_i32 s27, s5, {BM}")
    k(f"v_add_u32 v{t+1}, s27, v{t+1}")
    k(f"v_lshl_add_u32 v{t}, v{t+1}, 1, v{t}")
    k(f"v_add_u32 v{t}, s22, v{t}")
    k("s_mov_b32 s27, 65536")
    epi_store(k, g, t, 27, row_i=False)
    k.branch(f"s_branch {Lend}")
    k.label(Lf1)
    k(f"v_lshrrev_b32 v{t}, 7, v0")
    k(f"v_mul_u32_u24 v{t}, {g.MT//2*256*1024}, v{t}")
    k(f"v_bfe_u32 v{t+1}, v0, 6, 1")
    k(f"v_mul_u32_u24 v{t+1}, {g.NT*1024}, v{t+1}")
    k(f"v_add_u32 v{t}, v{t}, v{t+1}")
    k(f"v_and_b32 v{t+1}, 63, v0")
    k(f"v_lshl_add_u32 v{t}, v{t+1}, 4, v{t}")
    k(f"s_mul_i32 s27, s5, {BM//32*256*1024}")
    k("s_lshl_b32 s28, s25, 6")
    k("s_add_u32 s27, s27, s28")
    k("s_add_u32 s27, s27, s22")
    k(f"v_add_u32 v{t}, s27, v{t}")
    epi_frag(k, g, t, pair_j=False)
    k.label(Lend)
    k("s_endpgm")
    return name, g

def epi_store(k, g, t, s_step, row_i):
    tmp = g.FA
    outer, inner = (g.MT, g.NT) if row_i else (g.NT, g.MT)
    for o in range(outer):
        for n in range(inner):
            i, j = (o, n) if row_i else (n, o)
            c = g.acc(i, j)
            q = tmp + (n % 4) * 8
            for r in range(4):
                k(f"v_accvgpr_read_b32 v{q+r}, a{c+r}")
            k(f"v_cvt_pk_bf16_f32 v{q+4}, v{q}, v{q+1}")
            k(f"v_cvt_pk_bf16_f32 v{q+5}, v{q+2}, v{q+3}")
            k(f"buffer_store_dwordx2 {v(q+4,2)}, v{t}, s[16:19], 0 offen offset:{n*32}")
        if o + 1 < outer:
            k(f"v_add_u32 v{t}, s{s_step}, v{t}")

def epi_frag(k, g, t, pair_j):
    tmp = g.FA
    cnt = 0
    if pair_j:
        groups = [(i, [(i, j), (i, j + 1)] , j // 2 * 1024) for i in range(g.MT) for j in range(0, g.NT, 2)]
        ostep = 128 * 1024
    else:
        groups = [(i // 2, [(i, j), (i + 1, j)], j * 1024) for i in range(0, g.MT, 2) for j in range(g.NT)]
        ostep = 256 * 1024
    cur = 0
    for o, tiles, off in groups:
        while cur < o:
            k(f"v_add_u32 v{t}, {ostep}, v{t}")
            cur += 1
        q = tmp + (cnt % 3) * 12
        cnt += 1
        for n, (i, j) in enumerate(tiles):
            c = g.acc(i, j)
            for r in range(4):
                k(f"v_accvgpr_read_b32 v{q+4*n+r}, a{c+r}")
        for n in range(4):
            k(f"v_cvt_pk_bf16_f32 v{q+8+n}, v{q+2*n}, v{q+2*n+1}")
        k(f"buffer_store_dwordx4 {v(q+8,4)}, v{t}, s[16:19], 0 offen offset:{off}")
```

```python
import sys, os
from common import *
from k_proj import gen_proj
from k_chain import gen_chain
from k_attna import gen_attna
from k_attnb import gen_attnb
from k_final import gen_final

HEADER = open('gated_mix__memory_aug_recurrent_mem_tr__sliding_block__prompt.s.ref').read().split('; Override launch')[0]

def build(out):
    k = K()
    launches = []
    descs = []
    name, g = gen_proj(k, 128, 128)
    launches.append(f"; @launch kernel={name} grid=({112*16},1,1) block=(256,1,1) lds={g.lds_bytes}")
    nv = (g.vend + 3) // 4 * 4
    descs.append(kernel_desc(name, nv + g.MT * g.NT * 4, nv))
    name = gen_chain(k, prof=bool(os.environ.get('PROF')))
    launches.append(f"; @launch kernel={name} grid=(256,1,1) block=(256,1,1) lds=163840")
    descs.append(kernel_desc(name, 512, 256))
    name, nv = gen_attna(k)
    launches.append(f"; @launch kernel={name} grid=(512,1,1) block=(256,1,1) lds=0")
    descs.append(kernel_desc(name, nv, nv))
    name, nv = gen_attnb(k)
    launches.append(f"; @launch kernel={name} grid=(1024,1,1) block=(256,1,1) lds=0")
    descs.append(kernel_desc(name, nv, nv))
    name, g, nt, nacc = gen_final(k)
    launches.append(f"; @launch kernel={name} grid=({nt},1,1) block=(256,1,1) lds={g.lds_bytes}")
    nv = (g.vend + 3) // 4 * 4
    descs.append(kernel_desc(name, nv + nacc, nv))
    text = HEADER + "\n".join(launches) + "\n" + '.amdgcn_target "amdgcn-amd-amdhsa--gfx950"\n.text\n' + k.text()
    text += '.section .rodata,"a"\n' + "".join(".p2align 6\n" + d for d in descs)
    open(out, 'w').write(text)

if __name__ == '__main__':
    build(sys.argv[1] if len(sys.argv) > 1 else 'gated_mix__memory_aug_recurrent_mem_tr__sliding_block__prompt.s')
```

```python
from common import *

L_W = 0
L_MEM = 147456
MEM_STR = 1168
L_SC = L_MEM + 8 * MEM_STR
L_SPARE = L_SC + 6144
XCH_INBOX = WS_XCH
INBOX_PAR = 1 << 20
XCH_MEMSLOT = WS_XCH + 2 * INBOX_PAR

def Qf(ks, t):
    return a((2 * ks + t) * 4, 4)
def Kf(ks, t):
    i = 2 * ks + t
    if i < 28: return a(144 + i * 4, 4)
    return v(80 + (i - 28) * 4, 4)
def Wof(T, ks):
    return v(112 + (T * 4 + ks) * 4, 4)
def half(reg, hh):
    kind = reg[0]; lo = int(reg[2:reg.index(':')])
    return f"{kind}[{lo+2*hh}:{lo+2*hh+1}]"

def gen_chain(k, worker=None, prof=False):
    name = "chain_kernel"
    def stamp(i):
        if not prof: return
        k("s_memtime s[60:61]")
        k("s_waitcnt lgkmcnt(0)")
        k("s_sub_u32 s62, s60, s63")
        k(f"s_add_u32 s{92+i}, s{92+i}, s62")
        k("s_mov_b32 s63, s60")
    kernel_begin(k, name)
    Lend = k.newlabel('Lend')
    k("s_cmp_ge_u32 s2, 256")
    k.branch(f"s_cbranch_scc1 {Lend}")
    load_kernargs(k)
    make_srd(k, 12, P_DBG, 256)
    make_srd(k, 16, P_WS, WS_BYTES)
    make_srd(k, 20, P_MEM0, 9216)
    k("v_lshrrev_b32 v1, 6, v0")
    k("v_readfirstlane_b32 s25, v1")
    k("s_mov_b32 s36, 0x00ff00ff"); k("s_mov_b32 s37, 0x00ff00ff")
    k("s_mov_b32 s38, -1"); k("s_mov_b32 s39, 0")
    k("s_mov_b32 s42, -1"); k("s_mov_b32 s43, 0xffff")
    k("s_mov_b32 s46, 0x3e0293ee")
    k("s_mov_b32 s47, 0x3e0293ee")
    Lr_done = k.newlabel('Lrd'); Lr_store = k.newlabel('Lrs'); Lr_poll = k.newlabel('Lrp'); Lr_nocas = k.newlabel('Lrn')
    k("s_cmp_lg_u32 s25, 0")
    k.branch(f"s_cbranch_scc1 {Lr_done}")
    k("s_mov_b64 exec, 1")
    k("s_getreg_b32 s4, hwreg(HW_REG_XCC_ID)")
    k("s_and_b32 s4, s4, 7")
    k("s_lshl_b32 s5, s4, 2")
    k("v_mov_b32 v1, s5")
    k("v_mov_b32 v2, 1")
    k("buffer_atomic_add v2, v1, s[12:15], 0 offen sc0")
    k("s_waitcnt vmcnt(0)")
    k("v_readfirstlane_b32 s5, v2")
    k("s_mov_b32 s24, -1")
    k("s_cmp_ge_u32 s5, 32")
    k.branch(f"s_cbranch_scc1 {Lr_store}")
    k("s_add_u32 s6, s4, 1")
    k("s_cmp_lg_u32 s5, 31")
    k.branch(f"s_cbranch_scc1 {Lr_nocas}")
    k("v_mov_b32 v2, s6"); k("v_mov_b32 v3, 0"); k("v_mov_b32 v1, 32")
    k("buffer_atomic_cmpswap v[2:3], v1, s[12:15], 0 offen sc0")
    k("s_waitcnt vmcnt(0)")
    k.label(Lr_nocas)
    k("s_mov_b32 s44, 0")
    k("v_mov_b32 v1, 32")
    k.label(Lr_poll)
    k("buffer_load_dword v2, v1, s[12:15], 0 offen sc1")
    k("s_waitcnt vmcnt(0)")
    k("v_readfirstlane_b32 s7, v2")
    k("s_add_u32 s44, s44, 1")
    k("s_cmp_gt_u32 s44, 0x8000")
    k.branch(f"s_cbranch_scc1 {Lr_store}")
    k("s_cmp_eq_u32 s7, 0")
    k.branch(f"s_cbranch_scc1 {Lr_poll}")
    k("s_cmp_eq_u32 s7, s6")
    k("s_cselect_b32 s24, s5, -1")
    k.label(Lr_store)
    k("v_mov_b32 v1, s24")
    k(f"v_mov_b32 v2, {L_SPARE}")
    k("ds_write_b32 v2, v1")
    k("s_waitcnt lgkmcnt(0)")
    k("s_mov_b64 exec, -1")
    k.label(Lr_done)
    k("s_barrier")
    k(f"v_mov_b32 v2, {L_SPARE}")
    k("ds_read_b32 v1, v2")
    k("s_waitcnt lgkmcnt(0)")
    k("v_readfirstlane_b32 s24, v1")
    k("s_cmp_lt_i32 s24, 0")
    k.branch(f"s_cbranch_scc1 {Lend if worker is None else worker}")
    if prof:
        for i in range(10): k(f"s_mov_b32 s{92+i}, 0")
        k("s_memtime s[60:61]"); k("s_waitcnt lgkmcnt(0)"); k("s_mov_b32 s63, s60")
    k("s_mov_b32 s40, 0xff"); k("s_mov_b32 s41, 0")
    for r in range(4): k(f"v_mov_b32 v{16+r}, -1")
    k("s_lshl_b32 s4, s24, 14")
    k("v_lshlrev_b32 v1, 4, v0")
    k("v_add_u32 v1, s4, v1")
    k("s_lshl_b32 s48, s24, 8")
    k("v_and_b32 v2, 31, v0")
    k("v_lshlrev_b32 v2, 3, v2")
    k("v_add_u32 v2, s48, v2")
    Lc2 = k.newlabel('Lc2')
    for half_ in range(2):
        for p in range(2):
            for j in range(4):
                k(f"s_mov_b32 s5, {XCH_INBOX + p * INBOX_PAR + j * 4096 + half_ * 32 * 16384}")
                k(f"buffer_store_dwordx4 v[16:19], v1, s[16:19], s5 offen")
        for q in range(3):
            k(f"s_mov_b32 s5, {XCH_MEMSLOT + q * 9216 + half_ * 8192}")
            k(f"buffer_store_dwordx2 v[16:17], v2, s[16:19], s5 offen")
        if half_ == 0:
            k("s_cmp_ge_u32 s24, 4")
            k.branch(f"s_cbranch_scc1 {Lc2}")
    k.label(Lc2)
    k("s_waitcnt vmcnt(0)")
    k("s_barrier")
    Lnr = k.newlabel('Lnr')
    k("s_cmp_lg_u32 s25, 0")
    k.branch(f"s_cbranch_scc1 {Lnr}")
    k("s_mov_b64 exec, 1")
    k("v_mov_b32 v1, 36"); k("v_mov_b32 v2, 1")
    k("buffer_atomic_add v2, v1, s[12:15], 0 offen")
    k("s_mov_b64 exec, -1")
    k.label(Lnr)
    k("v_lshrrev_b32 v1, 4, v0")
    k("v_and_b32 v2, 15, v0")
    k("v_and_b32 v3, 3, v1")
    k("v_bfe_u32 v6, v1, 3, 1")
    k("v_lshl_add_u32 v3, v6, 2, v3")
    k("v_lshrrev_b32 v6, 1, v2")
    k("v_xor_b32 v3, v3, v6")
    k("v_lshlrev_b32 v3, 5, v3")
    k("v_and_b32 v6, 1, v2")
    k("v_lshl_add_u32 v3, v6, 4, v3")
    k("v_lshl_add_u32 v4, v1, 8, v3")
    k("v_lshlrev_b32 v5, 13, v1")
    k("v_lshl_add_u32 v5, v2, 4, v5")
    k("s_lshl_b32 s4, s24, 8")
    k("v_add_u32 v5, s4, v5")
    k("v_bfe_u32 v6, v0, 4, 2")
    k("v_bfe_u32 v7, v0, 2, 2")
    k("v_and_b32 v8, 1, v6")
    k("v_lshl_add_u32 v8, v8, 2, v7")
    k("v_lshl_add_u32 v9, v6, 3, v7")
    k("v_lshlrev_b32 v9, 8, v9")
    k("v_and_b32 v10, 3, v0")
    k("v_lshl_add_u32 v9, v10, 3, v9")
    k("s_lshl_b32 s4, s25, 1")
    for t in range(2):
        k(f"s_add_u32 s5, s4, {t}")
        k(f"v_xor_b32 v10, s5, v8")
        k(f"v_lshl_add_u32 v{1+t}, v10, 5, v9")
    def stage_qkv(P, stg, nbatch_regs):
        make_srd(k, 8, P, 576 * 8192)
        k("v_mov_b32 v11, v5")
        k("v_mov_b32 v12, v4")
        j = 0
        while j < 36:
            nb = min(nbatch_regs, 36 - j)
            for i in range(nb):
                k(f"buffer_load_dwordx4 {stg(i)}, v11, s[8:11], 0 offen")
                k("v_add_u32 v11, 0x20000, v11")
            for i in range(nb):
                k(f"s_waitcnt vmcnt({nb-1-i})")
                k(f"ds_write_b128 v12, {stg(i)}")
                k("v_add_u32 v12, 0x1000, v12")
            j += nb
        k("s_waitcnt lgkmcnt(0)")
        k("s_barrier")
    def read_qkv_frags(dst):
        k("v_mov_b32 v11, v1"); k("v_mov_b32 v12, v2")
        for ks in range(18):
            for t in range(2):
                for hh in range(2):
                    k(f"ds_read_b64_tr_b16 {half(dst(ks,t),hh)}, v{11+t} offset:{(ks%8)*8192 + hh*1024}")
            if ks % 8 == 7:
                k("v_add_u32 v11, 0x10000, v11"); k("v_add_u32 v12, 0x10000, v12")
        k("s_waitcnt lgkmcnt(0)")
        k("s_barrier")
    stgW = lambda i: v(112 + 4 * i, 4)
    stage_qkv(P_WQ, stgW, 36); read_qkv_frags(Qf)
    stage_qkv(P_WV, stgW, 36); read_qkv_frags(Kf)
    make_srd(k, 8, P_WO, 4096 * 1152)
    k("s_mul_i32 s4, s24, 147456")
    k("v_lshlrev_b32 v11, 4, v0")
    k("v_mov_b32 v12, v11")
    k("v_add_u32 v11, s4, v11")
    for i in range(36):
        k(f"buffer_load_dwordx4 {stgW(i)}, v11, s[8:11], 0 offen")
        k("v_add_u32 v11, 0x1000, v11")
    for i in range(36):
        k(f"s_waitcnt vmcnt({35-i})")
        k(f"ds_write_b128 v12, {stgW(i)}")
        k("v_add_u32 v12, 0x1000, v12")
    k("s_waitcnt lgkmcnt(0)")
    k("s_barrier")
    k("v_bfe_u32 v6, v0, 4, 2"); k("v_bfe_u32 v7, v0, 2, 2")
    k("v_lshl_add_u32 v9, v6, 2, v7")
    k("v_mul_u32_u24 v9, 1152, v9")
    k("v_and_b32 v10, 3, v0")
    k("v_lshl_add_u32 v9, v10, 3, v9")
    k("s_mul_i32 s4, s25, 288")
    k("v_add_u32 v11, s4, v9")
    for ks in range(4):
        for T in range(9):
            for hh in range(2):
                k(f"ds_read_b64_tr_b16 {half(Wof(T,ks),hh)}, v11 offset:{hh*16*1152 + T*32}")
        k(f"v_add_u32 v11, {32*1152}, v11")
    k("s_waitcnt lgkmcnt(0)")
    k("s_barrier")
    make_srd(k, 8, P_WK, 576 * 8192)
    k("v_mov_b32 v6, v5")
    k(f"v_add_u32 v7, {L_MEM}, v4")
    k(f"v_add_u32 v1, {L_MEM}, v1"); k(f"v_add_u32 v2, {L_MEM}, v2")
    k("v_and_b32 v3, 63, v0")
    k("v_lshlrev_b32 v3, 4, v3")
    k("s_mul_i32 s4, s25, 36864")
    k("v_add_u32 v3, s4, v3")
    for b in range(3):
        nks = min(8, 18 - 8 * b)
        for i in range(2 * nks):
            k(f"buffer_load_dwordx4 {v(16+4*i,4)}, v6, s[8:11], 0 offen")
            k("v_add_u32 v6, 0x20000, v6")
        for kk in range(nks):
            ks = 8 * b + kk
            k(f"s_waitcnt vmcnt({2*(nks-1-kk)})")
            k(f"ds_write_b128 v7, {v(16+8*kk,4)}")
            k(f"ds_write_b128 v7, {v(20+8*kk,4)} offset:4096")
            k("s_waitcnt lgkmcnt(0)")
            k("s_barrier")
            for t in range(2):
                for hh in range(2):
                    k(f"ds_read_b64_tr_b16 {v(8+4*t+2*hh,2)}, v{1+t} offset:{hh*1024}")
            k("s_waitcnt lgkmcnt(0)")
            for t in range(2):
                k(f"ds_write_b128 v3, {v(8+4*t,4)} offset:{(2*ks+t)*1024}")
            k("s_waitcnt lgkmcnt(0)")
            k("s_barrier")
    k("v_mov_b32 v1, v3")
    k("v_mbcnt_lo_u32_b32 v12, -1, 0")
    k("v_mbcnt_hi_u32_b32 v12, -1, v12")
    k("v_and_b32 v13, 15, v12")
    k("v_lshrrev_b32 v14, 4, v12")
    k("v_and_b32 v15, 7, v12")
    k("s_mul_i32 s4, s25, 9")
    k("v_mul_u32_u24 v16, 3, v14")
    k("v_add_u32 v16, s4, v16")
    k("v_lshlrev_b32 v11, 8, v16")
    k("v_lshl_add_u32 v11, v13, 4, v11")
    k("v_lshrrev_b32 v17, 1, v13")
    k("v_and_b32 v18, 1, v13")
    k("v_lshlrev_b32 v19, 5, v16")
    k("v_lshl_add_u32 v19, v18, 4, v19")
    k(f"v_mul_u32_u24 v4, {MEM_STR}, v17")
    k("v_add_u32 v4, v4, v19")
    k(f"v_add_u32 v4, {L_MEM}, v4")
    k("v_mul_u32_u24 v20, 1152, v17")
    k("v_add_u32 v20, v20, v19")
    k("s_mov_b64 exec, s[42:43]")
    for i in range(3):
        k(f"buffer_load_dwordx4 {v(24+4*i,4)}, v20, s[20:23], 0 offen offset:{32*i}")
    k("s_waitcnt vmcnt(0)")
    for i in range(3):
        k(f"ds_write_b128 v4, {v(24+4*i,4)} offset:{32*i}")
    k("s_mov_b64 exec, -1")
    k(f"v_mul_u32_u24 v0, {MEM_STR}, v15")
    k("v_lshl_add_u32 v0, v14, 4, v0")
    k(f"v_add_u32 v0, {L_MEM}, v0")
    k("v_lshlrev_b32 v3, 4, v12")
    k("v_lshl_add_u32 v8, v14, 3, v15")
    k("v_lshlrev_b32 v8, 4, v8")
    k(f"v_add_u32 v8, {L_SC}, v8")
    k("s_mul_i32 s4, s25, 1536")
    k("v_add_u32 v7, s4, v8")
    k("s_add_u32 s4, s25, 1"); k("s_and_b32 s4, s4, 3"); k("s_mul_i32 s4, s4, 1536"); k("v_add_u32 v5, s4, v8")
    k("s_add_u32 s4, s25, 2"); k("s_and_b32 s4, s4, 3"); k("s_mul_i32 s57, s4, 1536")
    k("s_add_u32 s4, s25, 3"); k("s_and_b32 s4, s4, 3"); k("s_mul_i32 s45, s4, 1536")
    k("v_lshl_add_u32 v9, v15, 2, v14")
    k("v_lshlrev_b32 v9, 4, v9")
    k("v_lshrrev_b32 v16, 3, v13")
    k("v_lshl_add_u32 v9, v16, 14, v9")
    k("s_lshl_b32 s4, s24, 9")
    k("v_add_u32 v9, s4, v9")
    k("v_lshrrev_b32 v16, 3, v12")
    k("v_lshlrev_b32 v10, 11, v16")
    k("v_lshl_add_u32 v10, v15, 4, v10")
    k("s_lshl_b32 s4, s24, 14"); k("s_lshl_b32 s5, s25, 7"); k("s_add_u32 s4, s4, s5")
    k("v_add_u32 v10, s4, v10")
    k("v_lshlrev_b32 v2, 3, v15")
    k("s_lshl_b32 s4, s25, 6"); k("s_add_u32 s4, s4, s48")
    k("v_add_u32 v2, s4, v2")
    for P in range(5):
        k(f"s_mul_i32 s4, s25, 9"); k(f"s_add_u32 s4, s4, {2*P}")
        k("s_lshl_b32 s5, s4, 14")
        k(f"s_add_u32 s{50+P}, s5, {XCH_INBOX}")
    k("s_mov_b32 s26, 0")
    k("s_lshl_b32 s4, s24, 2"); k("s_add_u32 s4, s4, s25"); k("s_lshl_b32 s4, s4, 10")
    k(f"s_add_u32 s27, s4, {WS_KX}"); k(f"s_add_u32 s28, s27, {128*1024}")
    k("s_lshl_b32 s5, s4, 1")
    k(f"s_add_u32 s29, s5, {WS_VT}")
    k("s_lshr_b32 s5, s4, 1")
    k(f"s_add_u32 s31, s5, {WS_KM - L_SC}"); k(f"s_add_u32 s32, s5, {WS_VMT}")
    k(f"s_mov_b32 s33, {XCH_INBOX}"); k(f"s_mov_b32 s49, {XCH_INBOX + 32*16384}")
    k(f"s_mov_b32 s34, {XCH_MEMSLOT}"); k(f"s_mov_b32 s35, {XCH_MEMSLOT + 9216}"); k(f"s_mov_b32 s30, {XCH_MEMSLOT + 2*9216}")
    def kv_wait_sync(s_off):
        L = k.newlabel('Lkw'); Ld = k.newlabel('Lkwd')
        k("s_mov_b32 s44, 0")
        k(f"v_mov_b32 v12, s{s_off}")
        k.label(L)
        k("buffer_load_dword v13, v12, s[12:15], 0 offen sc1")
        k("s_waitcnt vmcnt(0)")
        k("v_readfirstlane_b32 s4, v13")
        k("s_and_b32 s4, s4, 0xffff")
        k("s_cmp_ge_u32 s4, 64")
        k.branch(f"s_cbranch_scc1 {Ld}")
        k("s_sleep 2")
        k("s_add_u32 s44, s44, 1")
        k("s_cmp_lt_u32 s44, 0x8000")
        k.branch(f"s_cbranch_scc1 {L}")
        k.label(Ld)
    def prefetch_kv(check=False):
        if check and worker is not None:
            Lok = k.newlabel('Lkok')
            k("s_and_b32 s4, s55, 0xffff")
            k("s_cmp_ge_u32 s4, 64")
            k.branch(f"s_cbranch_scc1 {Lok}")
            kv_wait_sync(56)
            k.label(Lok)
        k("buffer_load_dwordx4 v[64:67], v3, s[16:19], s27 offen sc1")
        k("buffer_load_dwordx4 v[68:71], v3, s[16:19], s28 offen sc1")
        k("buffer_load_dwordx4 v[72:75], v3, s[16:19], s29 offen sc1")
        k("buffer_load_dwordx4 v[76:79], v3, s[16:19], s29 offen offset:1024 sc1")
        k(f"s_add_u32 s27, s27, {256*1024}"); k(f"s_add_u32 s28, s28, {256*1024}")
        k(f"s_add_u32 s29, s29, {256*1024}")
    k("s_mov_b32 s56, 64")
    k("s_mov_b32 s55, 64")
    if worker is not None:
        kv_wait_sync(56)
    Lrw = k.newlabel('Lrw'); Lrw2 = k.newlabel('Lrw2')
    k("s_mov_b32 s44, 0")
    k("v_mov_b32 v12, 36")
    k.label(Lrw)
    k("buffer_load_dword v13, v12, s[12:15], 0 offen sc1")
    k("s_waitcnt vmcnt(0)")
    k("v_readfirstlane_b32 s4, v13")
    k("s_add_u32 s44, s44, 1")
    k("s_cmp_gt_u32 s44, 0x8000")
    k.branch(f"s_cbranch_scc1 {Lrw2}")
    k("s_cmp_lt_u32 s4, 32")
    k.branch(f"s_cbranch_scc1 {Lrw}")
    k.label(Lrw2)
    k("s_waitcnt lgkmcnt(0)")
    k("s_barrier")
    stamp(0)
    Lstep = k.newlabel('Lstep')
    k.label(Lstep)
    def chain_sig():
        if worker is None: return
        k("s_lshr_b32 s4, s26, 1"); k("s_lshl_b32 s4, s4, 2"); k("s_add_u32 s4, s4, 128")
        k("s_and_b32 s5, s26, 1"); k("s_lshl_b32 s5, s5, 4"); k("s_lshl_b32 s5, 1, s5")
        k("v_mov_b32 v54, s4"); k("v_mov_b32 v55, s5")
        k("s_mov_b64 exec, 1")
        k("buffer_atomic_add v55, v54, s[12:15], 0 offen")
        k("s_mov_b64 exec, -1")
    q = []
    def issue(tag, n=1):
        q.extend([tag] * n)
    def wait_for(*tags):
        idx = max(i for i, t_ in enumerate(q) if t_ in tags)
        n_after = len(q) - 1 - idx
        k(f"s_waitcnt lgkmcnt({min(n_after,15)})")
    def pk(op, d, x, y):
        k(f"{op} {v(d,2)}, {v(x,2)}, {v(y,2)}")
    readA_first = True
    prefetch_kv(check=True)
    nslow = 0
    if worker is not None:
        k("s_add_u32 s4, s26, 1"); k("s_lshr_b32 s4, s4, 2"); k("s_min_u32 s4, s4, 15")
        k("s_lshl_b32 s4, s4, 2"); k("s_add_u32 s56, s4, 64")
        k("v_mov_b32 v54, s56")
        k("buffer_load_dword v6, v54, s[12:15], 0 offen sc1")
        Lns = k.newlabel('Lns')
        k("s_sub_u32 s6, s26, 1"); k("s_max_i32 s6, s6, 0")
        k("s_lshr_b32 s4, s6, 1"); k("s_lshl_b32 s4, s4, 2"); k("s_add_u32 s4, s4, 128")
        k("s_and_b32 s5, s6, 1"); k("s_lshl_b32 s5, s5, 4"); k("s_lshl_b32 s5, 1, s5")
        k("s_cmp_eq_u32 s26, 0"); k("s_cselect_b32 s5, 0, s5")
        k("v_mov_b32 v20, s4"); k("v_mov_b32 v21, s5")
        k("s_mov_b64 exec, 1")
        k("buffer_atomic_add v21, v20, s[12:15], 0 offen")
        k("s_mov_b64 exec, -1")
        nslow = 2
    MA = [40, 44, 48]
    KFR = [(52, 56), (60, 12), (32, 36)]
    def readA(ks):
        k(f"ds_read_b128 {v(MA[ks%3],4)}, v0 offset:{ks*64}"); issue(('a', ks))
        for t in range(2):
            k(f"ds_read_b128 {v(KFR[ks%3][t],4)}, v1 offset:{(2*ks+t)*1024}")
        issue(('k', ks), 2)
    MV = [52, 56, 60, 12]
    def mreadV(ks):
        k(f"ds_read_b128 {v(MV[ks%4],4)}, v0 offset:{ks*64}"); issue(('m', ks))
    readA(0); readA(1)
    for ks in range(18):
        if ks + 2 < 18: readA(ks + 2)
        wait_for(('a', ks))
        mf = v(MA[ks % 3], 4)
        C = lambda r: (v(r, 4) if ks else "0")
        k(f"v_mfma_f32_16x16x32_bf16 v[16:19], {Qf(ks,0)}, {mf}, {C(16)}")
        k(f"v_mfma_f32_16x16x32_bf16 v[20:23], {Qf(ks,1)}, {mf}, {C(20)}")
        wait_for(('k', ks))
        k(f"v_mfma_f32_16x16x32_bf16 v[24:27], {v(KFR[ks%3][0],4)}, {mf}, {C(24)}")
        k(f"v_mfma_f32_16x16x32_bf16 v[28:31], {v(KFR[ks%3][1],4)}, {mf}, {C(28)}")
        if ks == 15: mreadV(0); mreadV(1)
        if ks == 16: mreadV(2); mreadV(3)
    stamp(1)
    def viter(ks):
        wait_for(('m', ks))
        mf = v(MV[ks % 4], 4)
        C = lambda r: (v(r, 4) if ks else "0")
        k(f"v_mfma_f32_16x16x32_bf16 v[32:35], {mf}, {Kf(ks,0)}, {C(32)}")
        k(f"v_mfma_f32_16x16x32_bf16 v[36:39], {mf}, {Kf(ks,1)}, {C(36)}")
        if ks + 4 < 18: mreadV(ks + 4)
    SX = [20, 28, 64]
    BX = [68, 16, 24]
    def sc_read(u, dstl):
        for tt in range(3):
            k(f"ds_read_b128 {v(dstl[tt],4)}, v8 offset:{u*1536 + tt*512}")
        issue(('sc', u), 3)
    def sc_add():
        for tt in range(3):
            for r in (0, 2): pk("v_pk_add_f32", SX[tt]+r, SX[tt]+r, BX[tt]+r)
    def xl(op):
        k("v_mov_b32 v69, v68"); k("v_permlane16_swap_b32 v68, v69"); k(f"{op} v68, v68, v69")
        k("v_mov_b32 v69, v68"); k("v_permlane32_swap_b32 v68, v69"); k(f"{op} v68, v68, v69")
    vi = iter(range(18))
    def V(n=1):
        for _ in range(n):
            ks = next(vi, None)
            if ks is not None: viter(ks)
    V(2)
    k("v_cvt_pk_bf16_f32 v16, v16, v17"); k("v_cvt_pk_bf16_f32 v17, v18, v19")
    k("v_cvt_pk_bf16_f32 v18, v20, v21"); k("v_cvt_pk_bf16_f32 v19, v22, v23")
    k("v_cvt_pk_bf16_f32 v24, v24, v25"); k("v_cvt_pk_bf16_f32 v25, v26, v27")
    k("v_cvt_pk_bf16_f32 v26, v28, v29"); k("v_cvt_pk_bf16_f32 v27, v30, v31")
    k(f"s_waitcnt vmcnt({2 + nslow})")
    k("v_mfma_f32_16x16x32_bf16 v[20:23], v[64:67], v[16:19], 0")
    k("v_mfma_f32_16x16x32_bf16 v[28:31], v[68:71], v[16:19], 0")
    k("v_mfma_f32_16x16x32_bf16 v[64:67], v[24:27], v[16:19], 0")
    V(1)
    k("s_mov_b64 exec, s[36:37]")
    k("buffer_store_dwordx4 v[24:27], v8, s[16:19], s31 offen sc1")
    for tt in range(3):
        k(f"ds_write_b128 v7, {v(SX[tt],4)} offset:{tt*512}")
    issue('scw', 3)
    k("s_mov_b64 exec, -1")
    V(1)
    k("v_add_u32 v71, s45, v8")
    k("v_add_u32 v70, s57, v8")
    wait_for('scw')
    k("s_barrier")
    RX = [[40, 44, 48], [16, 24, 68]]
    for tt in range(3): k(f"ds_read_b128 {v(RX[0][tt],4)}, v5 offset:{tt*512}")
    issue(('sc', 1), 3)
    for tt in range(2): k(f"ds_read_b128 {v(RX[1][tt],4)}, v70 offset:{tt*512}")
    issue(('sc', 2), 2)
    V(2)
    wait_for(('sc', 1))
    for tt in range(3):
        for r in (0, 2): pk("v_pk_add_f32", SX[tt]+r, SX[tt]+r, RX[0][tt]+r)
    for tt in range(3): k(f"ds_read_b128 {v(RX[0][tt],4)}, v71 offset:{tt*512}")
    issue(('sc', 3), 3)
    k(f"ds_read_b128 {v(68,4)}, v70 offset:1024")
    issue(('sc', 4), 1)
    wait_for(('sc', 2))
    for tt in range(2):
        for r in (0, 2): pk("v_pk_add_f32", SX[tt]+r, SX[tt]+r, RX[1][tt]+r)
    V(2)
    wait_for(('sc', 4))
    for tt in range(3):
        for r in (0, 2): pk("v_pk_add_f32", SX[tt]+r, SX[tt]+r, RX[0][tt]+r)
    for r in (0, 2): pk("v_pk_add_f32", SX[2]+r, SX[2]+r, 68+r)
    V(1)
    k("v_max3_f32 v68, v20, v21, v22"); k("v_max3_f32 v69, v23, v28, v29")
    k("v_max3_f32 v70, v30, v31, v64"); k("v_max3_f32 v71, v65, v66, v67")
    k("v_max3_f32 v68, v68, v69, v70"); k("v_max_f32 v68, v68, v71")
    V(1)
    xl("v_max_f32")
    V(1)
    k("v_mul_f32 v70, s46, v68")
    k("v_sub_f32 v70, 0, v70")
    k("v_mov_b32 v71, v70")
    for b in SX:
        for r in (0, 2): k(f"v_pk_fma_f32 {v(b+r,2)}, {v(b+r,2)}, s[46:47], v[70:71]")
    V(1)
    for b in SX:
        for r in range(4): k(f"v_exp_f32 v{b+r}, v{b+r}")
        V(1)
    k("v_cndmask_b32 v27, 0, 1.0, s[38:39]")
    k("v_pk_add_f32 v[68:69], v[20:21], v[22:23]")
    k("v_pk_add_f32 v[70:71], v[28:29], v[30:31]")
    k("v_pk_add_f32 v[16:17], v[64:65], v[66:67]")
    k("v_pk_add_f32 v[68:69], v[68:69], v[70:71]")
    k("v_add_f32 v16, v16, v17")
    k("v_add_f32 v68, v68, v69")
    k("v_fmac_f32 v68, v16, v27")
    V(1)
    xl("v_add_f32")
    V(18)
    k("v_rcp_f32 v68, v68")
    k("v_mov_b32 v69, v68")
    k("v_mul_f32 v70, v68, v27")
    k("v_mov_b32 v71, v70")
    for b in (20, 28):
        for r in (0, 2): k(f"v_pk_mul_f32 {v(b+r,2)}, {v(b+r,2)}, v[68:69]")
    for r in (0, 2): k(f"v_pk_mul_f32 {v(64+r,2)}, {v(64+r,2)}, v[70:71]")
    k("v_cvt_pk_bf16_f32 v16, v20, v21"); k("v_cvt_pk_bf16_f32 v17, v22, v23")
    k("v_cvt_pk_bf16_f32 v18, v28, v29"); k("v_cvt_pk_bf16_f32 v19, v30, v31")
    k("v_cvt_pk_bf16_f32 v24, v64, v65"); k("v_cvt_pk_bf16_f32 v25, v66, v67")
    k(f"s_waitcnt vmcnt({1 + nslow})")
    k("v_mfma_f32_16x16x32_bf16 v[20:23], v[72:75], v[16:19], 0")
    k("v_mfma_f32_16x16x32_bf16 v[28:31], v[76:79], v[16:19], 0")
    k("v_cvt_pk_bf16_f32 v32, v32, v33"); k("v_cvt_pk_bf16_f32 v33, v34, v35")
    k("v_cvt_pk_bf16_f32 v34, v36, v37"); k("v_cvt_pk_bf16_f32 v35, v38, v39")
    k("v_mfma_f32_16x16x16_bf16 v[20:23], v[32:33], v[24:25], v[20:23]")
    k("v_mfma_f32_16x16x16_bf16 v[28:31], v[34:35], v[24:25], v[28:31]")
    k("s_mov_b64 exec, s[38:39]")
    k("buffer_store_dwordx4 v[32:35], v3, s[16:19], s32 offen sc1")
    k("s_mov_b64 exec, -1")
    k("s_add_u32 s31, s31, 65536"); k("s_add_u32 s32, s32, 65536")
    k("s_cmp_eq_u32 s26, 63")
    Lfin = k.newlabel('Lfin')
    k.branch(f"s_cbranch_scc1 {Lfin}")
    stamp(3)
    k("s_barrier")
    k("v_cvt_pk_bf16_f32 v36, v20, v21"); k("v_cvt_pk_bf16_f32 v37, v22, v23")
    k("v_cvt_pk_bf16_f32 v38, v28, v29"); k("v_cvt_pk_bf16_f32 v39, v30, v31")
    k("s_mov_b64 exec, s[36:37]")
    k("ds_write_b128 v7, v[36:39]")
    k("s_mov_b64 exec, -1")
    k("s_waitcnt lgkmcnt(0)")
    k("s_barrier")
    for ks in range(4):
        k(f"ds_read_b128 {v(40+4*ks,4)}, v8 offset:{ks*1536}")
    OACC = [16, 20, 24, 28, 32, 36, 56, 60, 12]
    k("s_waitcnt lgkmcnt(0)")
    stamp(4)
    def send(P):
        if P < 4:
            a_, b_ = OACC[2*P], OACC[2*P+1]
            for r in range(4):
                k(f"v_mov_b32_dpp v{a_+r}, v{b_+r} row_shr:8 row_mask:0xf bank_mask:0xc")
            k(f"buffer_store_dwordx4 {v(a_,4)}, v9, s[16:19], s{50+P} offen")
        else:
            k("s_mov_b64 exec, s[36:37]")
            k(f"buffer_store_dwordx4 {v(OACC[8],4)}, v9, s[16:19], s54 offen")
            k("s_mov_b64 exec, -1")
    for T in range(9):
        for ks in range(4):
            c = v(OACC[T], 4)
            k(f"v_mfma_f32_16x16x32_bf16 {c}, {Wof(T,ks)}, {v(40+4*ks,4)}, {c if ks else '0'}")
        if T in (2, 4, 6, 8): send(T // 2 - 1)
    send(4)
    stamp(5)
    for P in range(5):
        k(f"s_xor_b32 s{50+P}, s{50+P}, {INBOX_PAR}")
    stamp(6)
    def gather(ntile):
        k("s_mov_b32 s44, 0")
        Lp1 = k.newlabel('Lp1'); Lp1d = k.newlabel('Lp1d')
        k.label(Lp1)
        for tl in range(ntile):
            for i in range(4):
                k(f"buffer_load_dwordx4 {v(16+16*tl+4*i,4)}, v10, s[16:19], s{49 if tl else 33} offen offset:{i*512} sc1")
        k("s_waitcnt vmcnt(0)")
        n = 16 * ntile
        k("v_max3_u32 v48, v16, v17, v18")
        k("v_max3_u32 v49, v19, v20, v21")
        i = 22
        while i < 16 + n:
            k(f"v_max3_u32 v48, v48, v{i}, v{i+1}")
            if i + 3 < 16 + n: k(f"v_max3_u32 v49, v49, v{i+2}, v{i+3}")
            i += 4
        k("v_max_u32 v48, v48, v49")
        k("v_cmp_eq_u32 vcc, -1, v48")
        k.branch(f"s_cbranch_vccz {Lp1d}")
        k("s_add_u32 s44, s44, 1")
        k("s_cmp_lt_u32 s44, 0x8000")
        k.branch(f"s_cbranch_scc1 {Lp1}")
        k.label(Lp1d)
        stamp(2)
        B = [16 + 16 * tl for tl in range(ntile)]
        for b0 in B:
            for r in (0, 2):
                pk("v_pk_add_f32", b0+r, b0+r, b0+4+r); pk("v_pk_add_f32", b0+8+r, b0+8+r, b0+12+r)
        for b0 in B:
            for r in (0, 2): pk("v_pk_add_f32", b0+r, b0+r, b0+8+r)
        for b0 in B:
            for r in range(4):
                k(f"v_add_f32_dpp v{b0+r}, v{b0+r}, v{b0+r} row_ror:8 row_mask:0xf bank_mask:0xf")
        for sw in ("v_permlane16_swap_b32", "v_permlane32_swap_b32"):
            for b0 in B:
                for r in range(4): k(f"v_mov_b32 v{b0+4+r}, v{b0+r}")
            for b0 in B:
                for r in range(4): k(f"{sw} v{b0+r}, v{b0+4+r}")
            for b0 in B:
                for r in (0, 2): pk("v_pk_add_f32", b0+r, b0+r, b0+4+r)
        for b0 in B:
            k(f"v_cvt_pk_bf16_f32 v{b0+4}, v{b0}, v{b0+1}"); k(f"v_cvt_pk_bf16_f32 v{b0+5}, v{b0+2}, v{b0+3}")
        for b0 in B:
            k(f"v_cmp_eq_u32 vcc, -1, v{b0+4}")
            k(f"v_cmp_eq_u32 s[6:7], -1, v{b0+5}")
            k(f"v_cndmask_b32 v{b0+4}, v{b0+4}, v52, vcc")
            k(f"v_cndmask_b32 v{b0+5}, v{b0+5}, v52, s[6:7]")
        k("s_mov_b64 exec, s[40:41]")
        k(f"buffer_store_dwordx2 v[20:21], v2, s[16:19], s34 offen")
        if ntile == 2:
            k("s_add_u32 s4, s34, 0x2000")
            k(f"buffer_store_dwordx2 v[36:37], v2, s[16:19], s4 offen")
        k("s_mov_b64 exec, -1")
    k("v_mov_b32 v52, 0x7fc07fc0")
    Lg2 = k.newlabel('Lg2'); Lg3 = k.newlabel('Lg3')
    k("s_cmp_lt_u32 s24, 4")
    k.branch(f"s_cbranch_scc1 {Lg2}")
    gather(1)
    k.branch(f"s_branch {Lg3}")
    k.label(Lg2)
    gather(2)
    for r in range(4): k(f"v_mov_b32 v{48+r}, -1")
    for i in range(4):
        k(f"buffer_store_dwordx4 v[48:51], v10, s[16:19], s49 offen offset:{i*512}")
    k("s_mov_b64 exec, s[40:41]")
    k("s_add_u32 s4, s30, 0x2000")
    k("buffer_store_dwordx2 v[48:49], v2, s[16:19], s4 offen")
    k("s_mov_b64 exec, -1")
    k.label(Lg3)
    if worker is not None:
        k("v_readfirstlane_b32 s55, v6")
    stamp(7)
    for r in range(4): k(f"v_mov_b32 v{48+r}, -1")
    for i in range(4):
        k(f"buffer_store_dwordx4 v[48:51], v10, s[16:19], s33 offen offset:{i*512}")
    k("s_mov_b64 exec, s[40:41]")
    k("buffer_store_dwordx2 v[48:49], v2, s[16:19], s30 offen")
    k("s_mov_b64 exec, -1")
    stamp(8)
    k("s_mov_b64 exec, s[42:43]")
    k("s_mov_b32 s44, 0")
    Lp2 = k.newlabel('Lp2'); Lp2d = k.newlabel('Lp2d')
    k.label(Lp2)
    for i in range(3):
        k(f"buffer_load_dwordx4 {v(16+4*i,4)}, v11, s[16:19], s34 offen offset:{256*i} sc1")
    k("s_waitcnt vmcnt(0)")
    k("v_max3_u32 v48, v16, v17, v18")
    k("v_max3_u32 v49, v19, v20, v21")
    k("v_max3_u32 v48, v48, v22, v23")
    k("v_max3_u32 v49, v49, v24, v25")
    k("v_max3_u32 v48, v48, v26, v27")
    k("v_max_u32 v48, v48, v49")
    k("v_cmp_eq_u32 vcc, -1, v48")
    k.branch(f"s_cbranch_vccz {Lp2d}")
    k("s_add_u32 s44, s44, 1")
    k("s_cmp_lt_u32 s44, 0x8000")
    k.branch(f"s_cbranch_scc1 {Lp2}")
    k.label(Lp2d)
    for i in range(3):
        k(f"ds_write_b128 v4, {v(16+4*i,4)} offset:{32*i}")
    k("s_mov_b64 exec, -1")
    k(f"s_xor_b32 s33, s33, {INBOX_PAR}"); k(f"s_xor_b32 s49, s49, {INBOX_PAR}")
    k("s_mov_b32 s4, s30"); k("s_mov_b32 s30, s34"); k("s_mov_b32 s34, s35"); k("s_mov_b32 s35, s4")
    k("s_add_u32 s26, s26, 1")
    k("s_waitcnt lgkmcnt(0)")
    k("s_barrier")
    stamp(9)
    k.branch(f"s_branch {Lstep}")
    k.label(Lfin)
    k("s_waitcnt vmcnt(0)")
    chain_sig()
    if prof:
        import os
        k(f"s_xor_b32 s4, s24, {int(os.environ.get('PROLE','0'))}")
        k(f"s_xor_b32 s5, s25, {int(os.environ.get('PWAVE','0'))}")
        k("s_or_b32 s4, s4, s5")
        k("s_cmp_lg_u32 s4, 0")
        k.branch(f"s_cbranch_scc1 {Lend}")
        k("s_mov_b64 exec, 1")
        for i in range(10):
            k(f"v_mov_b32 v12, s{92+i}"); k(f"v_mov_b32 v13, {WS_GATE + 65536 + 4*i}")
            k("buffer_store_dword v12, v13, s[16:19], 0 offen")
    k.branch(f"s_branch {Lend}")
    if worker is not None:
        from mega import gen_worker
        gen_worker(k, worker, Lend)
    k.label(Lend)
    k("s_endpgm")
    return name
```

```python
from common import *
from gemm import Gemm

def gen_proj(k, BM=128, BN=128):
    name = "proj_kernel"
    kernel_begin(k, name)
    NB = 96 + 14
    NBP = 112
    MB = 2048 // BM
    ntiles = NBP * MB
    g = Gemm(k, BM, BN, vbase=8, acc0=0)
    Lend = k.newlabel('Lend')
    k(f"s_cmp_ge_u32 s2, {ntiles}")
    k.branch(f"s_cbranch_scc1 {Lend}")
    k(f"s_mov_b32 s4, {(1<<32)//NBP + 1}")
    k("s_mul_hi_u32 s5, s2, s4")
    k(f"s_mul_i32 s6, s5, {NBP}")
    k("s_sub_u32 s6, s2, s6")
    k(f"s_cmp_ge_u32 s6, {NB}")
    k.branch(f"s_cbranch_scc1 {Lend}")
    load_kernargs(k)
    make_srd(k, 8, P_X, 2048 * 576 * 2)
    make_srd(k, 16, P_WS, WS_BYTES)
    Lq, Lk, Lv, Lb, Ldone = [k.newlabel('Lsel') for _ in range(5)]
    k("s_cmp_lt_u32 s6, 32"); k.branch(f"s_cbranch_scc1 {Lq}")
    k("s_cmp_lt_u32 s6, 64"); k.branch(f"s_cbranch_scc1 {Lk}")
    k("s_cmp_lt_u32 s6, 96"); k.branch(f"s_cbranch_scc1 {Lv}")
    k.branch(f"s_branch {Lb}")
    for L, P, nb0, dst, var in ((Lq, P_WQ, 0, WS_QX, 0), (Lk, P_WK, 32, WS_KX, 0), (Lv, P_WV, 64, WS_VT, 1)):
        k.label(L)
        make_srd(k, 12, P, 576 * 4096 * 2)
        k("s_mov_b32 s20, 8192")
        k(f"s_sub_u32 s21, s6, {nb0}")
        k(f"s_lshl_b32 s25, s21, 7")
        k(f"s_lshl_b32 s21, s21, 8")
        k(f"s_mov_b32 s22, {dst}")
        k(f"s_mov_b32 s23, {8192 if var == 0 else 4096}")
        k(f"s_mov_b32 s24, {var}")
        k(f"s_mov_b32 s26, 4096")
        k("s_mov_b32 s34, 1")
        k.branch(f"s_branch {Ldone}")
    k.label(Lb)
    make_srd(k, 12, P_WQKVB, 576 * 1728 * 2)
    k("s_mov_b32 s20, 3456")
    k("s_sub_u32 s21, s6, 96")
    k("s_lshl_b32 s25, s21, 7")
    k("s_lshl_b32 s21, s21, 8")
    k(f"s_mov_b32 s22, {WS_QKB}")
    k("s_mov_b32 s23, 2304")
    k("s_mov_b32 s24, 0")
    k("s_mov_b32 s26, 1152")
    k("s_mov_b32 s34, 0")
    k("s_cmp_lt_u32 s25, 1152")
    k.branch(f"s_cbranch_scc1 {Ldone}")
    k("s_sub_u32 s25, s25, 1152")
    k(f"s_mov_b32 s22, {WS_VTB}")
    k("s_mov_b32 s23, 4096")
    k("s_mov_b32 s24, 1")
    k("s_mov_b32 s26, 576")
    k.label(Ldone)
    k(f"s_mul_i32 s27, s5, {BM*1152}")
    k("s_mov_b32 s28, 1152")
    k("s_lshl_b32 s29, s20, 6")
    k("s_mov_b32 s30, 0"); k("s_mov_b32 s31, 0")
    g.setup_lds_addrs()
    g.setup_global(28, 27, 20, 21)
    g.zero_acc()
    Lv1 = k.newlabel('Lv1'); Lepi = k.newlabel('Lepi')
    k("s_cmp_eq_u32 s24, 1")
    k.branch(f"s_cbranch_scc1 {Lv1}")
    g.run(576, 0, 8, 12, 30, 31, 29, first_barrier=False)
    t = g.vtmp
    Lf0 = k.newlabel('Lf0')
    k("s_cmp_eq_u32 s34, 1")
    k.branch(f"s_cbranch_scc1 {Lf0}")
    k(f"v_lshrrev_b32 v{t}, 7, v0")
    k(f"v_mul_u32_u24 v{t}, {g.WM}, v{t}")
    k(f"v_and_b32 v{t+1}, 15, v0")
    k(f"v_add_u32 v{t}, v{t}, v{t+1}")
    k(f"s_mul_i32 s27, s5, {BM}")
    k(f"v_add_u32 v{t}, s27, v{t}")
    k(f"v_mul_lo_u32 v{t}, v{t}, s23")
    k(f"v_bfe_u32 v{t+1}, v0, 6, 1")
    k(f"v_mul_u32_u24 v{t+1}, {g.WN}, v{t+1}")
    k(f"v_bfe_u32 v{t+2}, v0, 4, 2")
    k(f"v_lshl_add_u32 v{t+1}, v{t+2}, 2, v{t+1}")
    k(f"v_add_u32 v{t+1}, s25, v{t+1}")
    k(f"v_lshl_add_u32 v{t}, v{t+1}, 1, v{t}")
    k(f"v_add_u32 v{t}, s22, v{t}")
    k(f"s_lshl_b32 s27, s23, 4")
    epi_store(k, g, t, 27, row_i=True)
    k.branch(f"s_branch {Lend}")
    k.label(Lf0)
    k(f"v_lshrrev_b32 v{t}, 7, v0")
    k(f"v_mul_u32_u24 v{t}, {g.MT*128*1024}, v{t}")
    k(f"v_bfe_u32 v{t+1}, v0, 6, 1")
    k(f"v_mul_u32_u24 v{t+1}, {g.NT//2*1024}, v{t+1}")
    k(f"v_add_u32 v{t}, v{t}, v{t+1}")
    k(f"v_and_b32 v{t+1}, 63, v0")
    k(f"v_lshl_add_u32 v{t}, v{t+1}, 4, v{t}")
    k(f"s_mul_i32 s27, s5, {BM//16*128*1024}")
    k("s_lshl_b32 s28, s25, 5")
    k("s_add_u32 s27, s27, s28")
    k("s_add_u32 s27, s27, s22")
    k(f"v_add_u32 v{t}, s27, v{t}")
    epi_frag(k, g, t, pair_j=True)
    k.branch(f"s_branch {Lend}")
    k.label(Lv1)
    g.run(576, 1, 8, 12, 30, 31, 29, first_barrier=False)
    Lf1 = k.newlabel('Lf1')
    k("s_cmp_eq_u32 s34, 1")
    k.branch(f"s_cbranch_scc1 {Lf1}")
    k(f"v_bfe_u32 v{t+1}, v0, 6, 1")
    k(f"v_mul_u32_u24 v{t+1}, {g.WN}, v{t+1}")
    k(f"v_add_u32 v{t+1}, s25, v{t+1}")
    k(f"v_readfirstlane_b32 s27, v{t+1}")
    k("s_cmp_ge_u32 s27, s26")
    k.branch(f"s_cbranch_scc1 {Lend}")
    k(f"v_and_b32 v{t+2}, 15, v0")
    k(f"v_add_u32 v{t+1}, v{t+1}, v{t+2}")
    k(f"v_lshlrev_b32 v{t}, 12, v{t+1}")
    k(f"v_lshrrev_b32 v{t+1}, 7, v0")
    k(f"v_mul_u32_u24 v{t+1}, {g.WM}, v{t+1}")
    k(f"v_bfe_u32 v{t+2}, v0, 4, 2")
    k(f"v_lshl_add_u32 v{t+1}, v{t+2}, 2, v{t+1}")
    k(f"s_mul_i32 s27, s5, {BM}")
    k(f"v_add_u32 v{t+1}, s27, v{t+1}")
    k(f"v_lshl_add_u32 v{t}, v{t+1}, 1, v{t}")
    k(f"v_add_u32 v{t}, s22, v{t}")
    k("s_mov_b32 s27, 65536")
    epi_store(k, g, t, 27, row_i=False)
    k.branch(f"s_branch {Lend}")
    k.label(Lf1)
    k(f"v_lshrrev_b32 v{t}, 7, v0")
    k(f"v_mul_u32_u24 v{t}, {g.MT//2*256*1024}, v{t}")
    k(f"v_bfe_u32 v{t+1}, v0, 6, 1")
    k(f"v_mul_u32_u24 v{t+1}, {g.NT*1024}, v{t+1}")
    k(f"v_add_u32 v{t}, v{t}, v{t+1}")
    k(f"v_and_b32 v{t+1}, 63, v0")
    k(f"v_lshl_add_u32 v{t}, v{t+1}, 4, v{t}")
    k(f"s_mul_i32 s27, s5, {BM//32*256*1024}")
    k("s_lshl_b32 s28, s25, 6")
    k("s_add_u32 s27, s27, s28")
    k("s_add_u32 s27, s27, s22")
    k(f"v_add_u32 v{t}, s27, v{t}")
    epi_frag(k, g, t, pair_j=False)
    k.label(Lend)
    k("s_endpgm")
    return name, g

def epi_store(k, g, t, s_step, row_i, sc=''):
    tmp = g.FA
    outer, inner = (g.MT, g.NT) if row_i else (g.NT, g.MT)
    for o in range(outer):
        for n in range(inner):
            i, j = (o, n) if row_i else (n, o)
            c = g.acc(i, j)
            q = tmp + (n % 4) * 8
            for r in range(4):
                k(f"v_accvgpr_read_b32 v{q+r}, a{c+r}")
            k(f"v_cvt_pk_bf16_f32 v{q+4}, v{q}, v{q+1}")
            k(f"v_cvt_pk_bf16_f32 v{q+5}, v{q+2}, v{q+3}")
            k(f"buffer_store_dwordx2 {v(q+4,2)}, v{t}, s[16:19], 0 offen offset:{n*32}{sc}")
        if o + 1 < outer:
            k(f"v_add_u32 v{t}, s{s_step}, v{t}")

def epi_frag(k, g, t, pair_j, sc=''):
    tmp = g.FA
    cnt = 0
    if pair_j:
        groups = [(i, [(i, j), (i, j + 1)] , j // 2 * 1024) for i in range(g.MT) for j in range(0, g.NT, 2)]
        ostep = 128 * 1024
    else:
        groups = [(i // 2, [(i, j), (i + 1, j)], j * 1024) for i in range(0, g.MT, 2) for j in range(g.NT)]
        ostep = 256 * 1024
    cur = 0
    for o, tiles, off in groups:
        while cur < o:
            k(f"v_add_u32 v{t}, {ostep}, v{t}")
            cur += 1
        q = tmp + (cnt % 3) * 12
        cnt += 1
        for n, (i, j) in enumerate(tiles):
            c = g.acc(i, j)
            for r in range(4):
                k(f"v_accvgpr_read_b32 v{q+4*n+r}, a{c+r}")
        for n in range(4):
            k(f"v_cvt_pk_bf16_f32 v{q+8+n}, v{q+2*n}, v{q+2*n+1}")
        k(f"buffer_store_dwordx4 {v(q+8,4)}, v{t}, s[16:19], 0 offen offset:{off}{sc}")
```

```python
from common import *
from gemm import Gemm
from k_proj import epi_store, epi_frag
from k_attna import rnd_pairs, xlane

WS_WOF = 96 * MiB
L_TASK = 162944 + 16
N_KV, N_Q, N_B, N_PREP, N_AB = 1024, 512, 224, 146, 1024
FIN_N = 64
N_FINSEG = 576 // FIN_N
PER_SEG = 8 + N_FINSEG
T0_Q = N_KV
T0_B = T0_Q + N_Q
T0_PREP = T0_B + N_B
T0_AB = T0_PREP + N_PREP
T0_SEG = T0_AB + N_AB
NTASK = T0_SEG + 64 * PER_SEG
D_QUEUE, D_PREP, D_MB, D_SEG = 10, 11, 16, 32
SPIN_MAX = 0x4000

def wait_field(k, s_off, shift, width, target):
    L = k.newlabel('Lw'); Ld = k.newlabel('Lwd')
    k("s_mov_b32 s6, 0")
    k(f"v_mov_b32 v1, s{s_off}")
    k.label(L)
    k("buffer_load_dword v2, v1, s[92:95], 0 offen sc1")
    k("s_waitcnt vmcnt(0)")
    k("v_readfirstlane_b32 s4, v2")
    if isinstance(shift, str):
        k(f"s_lshr_b32 s4, s4, {shift}")
        k(f"s_and_b32 s4, s4, {(1<<width)-1}")
    else:
        k(f"s_bfe_u32 s4, s4, {(width<<16)|shift}")
    k(f"s_cmp_ge_u32 s4, {target}")
    k.branch(f"s_cbranch_scc1 {Ld}")
    k("s_sleep 8")
    k("s_add_u32 s6, s6, 1")
    k(f"s_cmp_lt_u32 s6, {SPIN_MAX}")
    k.branch(f"s_cbranch_scc1 {L}")
    k.label(Ld)

def signal(k, s_off, s_val):
    k("s_waitcnt vmcnt(0)")
    k("s_barrier")
    L = k.newlabel('Lsig')
    k("s_cmp_lg_u32 s100, 0")
    k.branch(f"s_cbranch_scc1 {L}")
    k(f"v_mov_b32 v1, s{s_off}"); k(f"v_mov_b32 v2, s{s_val}")
    k("s_mov_b64 exec, 1")
    k("buffer_atomic_add v2, v1, s[92:95], 0 offen")
    k("s_mov_b64 exec, -1")
    k.label(L)

def task_proj(k, Lnext):
    BM = BN = 128
    g = Gemm(k, BM, BN, vbase=8, acc0=0)
    Lfin = k.newlabel('Lpf')
    make_srd(k, 8, P_X, 2048 * 576 * 2)
    Lq, Lk, Lv, Lb, Ldone = [k.newlabel('Lsel') for _ in range(5)]
    k("s_mov_b32 s36, s5"); k("s_mov_b32 s37, s6")
    k("s_cmp_lt_u32 s6, 32"); k.branch(f"s_cbranch_scc1 {Lq}")
    k("s_cmp_lt_u32 s6, 64"); k.branch(f"s_cbranch_scc1 {Lk}")
    k("s_cmp_lt_u32 s6, 96"); k.branch(f"s_cbranch_scc1 {Lv}")
    k.branch(f"s_branch {Lb}")
    for L, P, nb0, dst, var in ((Lq, P_WQ, 0, WS_QX, 0), (Lk, P_WK, 32, WS_KX, 0), (Lv, P_WV, 64, WS_VT, 1)):
        k.label(L)
        make_srd(k, 12, P, 576 * 4096 * 2)
        k("s_mov_b32 s20, 8192")
        k(f"s_sub_u32 s21, s6, {nb0}")
        k(f"s_lshl_b32 s25, s21, 7")
        k(f"s_lshl_b32 s21, s21, 8")
        k(f"s_mov_b32 s22, {dst}")
        k(f"s_mov_b32 s23, {8192 if var == 0 else 4096}")
        k(f"s_mov_b32 s24, {var}")
        k(f"s_mov_b32 s26, 4096")
        k("s_mov_b32 s34, 1")
        k.branch(f"s_branch {Ldone}")
    k.label(Lb)
    make_srd(k, 12, P_WQKVB, 576 * 1728 * 2)
    k("s_mov_b32 s20, 3456")
    k("s_sub_u32 s21, s6, 96")
    k("s_lshl_b32 s25, s21, 7")
    k("s_lshl_b32 s21, s21, 8")
    k(f"s_mov_b32 s22, {WS_QKB}")
    k("s_mov_b32 s23, 2304")
    k("s_mov_b32 s24, 0")
    k("s_mov_b32 s26, 1152")
    k("s_mov_b32 s34, 0")
    k("s_cmp_lt_u32 s25, 1152")
    k.branch(f"s_cbranch_scc1 {Ldone}")
    k("s_sub_u32 s25, s25, 1152")
    k(f"s_mov_b32 s22, {WS_VTB}")
    k("s_mov_b32 s23, 4096")
    k("s_mov_b32 s24, 1")
    k("s_mov_b32 s26, 576")
    k.label(Ldone)
    k(f"s_mul_i32 s27, s5, {BM*1152}")
    k("s_mov_b32 s28, 1152")
    k("s_lshl_b32 s29, s20, 6")
    k("s_mov_b32 s30, 0"); k("s_mov_b32 s31, 0")
    g.setup_lds_addrs()
    g.setup_global(28, 27, 20, 21)
    g.zero_acc()
    Lv1 = k.newlabel('Lv1')
    k("s_cmp_eq_u32 s24, 1")
    k.branch(f"s_cbranch_scc1 {Lv1}")
    g.run(576, 0, 8, 12, 30, 31, 29, first_barrier=False)
    t = g.vtmp
    Lf0 = k.newlabel('Lf0')
    k("s_cmp_eq_u32 s34, 1")
    k.branch(f"s_cbranch_scc1 {Lf0}")
    k(f"v_lshrrev_b32 v{t}, 7, v0")
    k(f"v_mul_u32_u24 v{t}, {g.WM}, v{t}")
    k(f"v_and_b32 v{t+1}, 15, v0")
    k(f"v_add_u32 v{t}, v{t}, v{t+1}")
    k(f"s_mul_i32 s27, s5, {BM}")
    k(f"v_add_u32 v{t}, s27, v{t}")
    k(f"v_mul_lo_u32 v{t}, v{t}, s23")
    k(f"v_bfe_u32 v{t+1}, v0, 6, 1")
    k(f"v_mul_u32_u24 v{t+1}, {g.WN}, v{t+1}")
    k(f"v_bfe_u32 v{t+2}, v0, 4, 2")
    k(f"v_lshl_add_u32 v{t+1}, v{t+2}, 2, v{t+1}")
    k(f"v_add_u32 v{t+1}, s25, v{t+1}")
    k(f"v_lshl_add_u32 v{t}, v{t+1}, 1, v{t}")
    k(f"v_add_u32 v{t}, s22, v{t}")
    k(f"s_lshl_b32 s27, s23, 4")
    epi_store(k, g, t, 27, row_i=True, sc=" sc1")
    k.branch(f"s_branch {Lfin}")
    k.label(Lf0)
    k(f"v_lshrrev_b32 v{t}, 7, v0")
    k(f"v_mul_u32_u24 v{t}, {g.MT*128*1024}, v{t}")
    k(f"v_bfe_u32 v{t+1}, v0, 6, 1")
    k(f"v_mul_u32_u24 v{t+1}, {g.NT//2*1024}, v{t+1}")
    k(f"v_add_u32 v{t}, v{t}, v{t+1}")
    k(f"v_and_b32 v{t+1}, 63, v0")
    k(f"v_lshl_add_u32 v{t}, v{t+1}, 4, v{t}")
    k(f"s_mul_i32 s27, s5, {BM//16*128*1024}")
    k("s_lshl_b32 s28, s25, 5")
    k("s_add_u32 s27, s27, s28")
    k("s_add_u32 s27, s27, s22")
    k(f"v_add_u32 v{t}, s27, v{t}")
    epi_frag(k, g, t, pair_j=True, sc=" sc1")
    k.branch(f"s_branch {Lfin}")
    k.label(Lv1)
    g.run(576, 1, 8, 12, 30, 31, 29, first_barrier=False)
    Lf1 = k.newlabel('Lf1')
    k("s_cmp_eq_u32 s34, 1")
    k.branch(f"s_cbranch_scc1 {Lf1}")
    k(f"v_bfe_u32 v{t+1}, v0, 6, 1")
    k(f"v_mul_u32_u24 v{t+1}, {g.WN}, v{t+1}")
    k(f"v_add_u32 v{t+1}, s25, v{t+1}")
    k(f"v_readfirstlane_b32 s27, v{t+1}")
    k("s_cmp_ge_u32 s27, s26")
    k.branch(f"s_cbranch_scc1 {Lfin}")
    k(f"v_and_b32 v{t+2}, 15, v0")
    k(f"v_add_u32 v{t+1}, v{t+1}, v{t+2}")
    k(f"v_lshlrev_b32 v{t}, 12, v{t+1}")
    k(f"v_lshrrev_b32 v{t+1}, 7, v0")
    k(f"v_mul_u32_u24 v{t+1}, {g.WM}, v{t+1}")
    k(f"v_bfe_u32 v{t+2}, v0, 4, 2")
    k(f"v_lshl_add_u32 v{t+1}, v{t+2}, 2, v{t+1}")
    k(f"s_mul_i32 s27, s5, {BM}")
    k(f"v_add_u32 v{t+1}, s27, v{t+1}")
    k(f"v_lshl_add_u32 v{t}, v{t+1}, 1, v{t}")
    k(f"v_add_u32 v{t}, s22, v{t}")
    k("s_mov_b32 s27, 65536")
    epi_store(k, g, t, 27, row_i=False, sc=" sc1")
    k.branch(f"s_branch {Lfin}")
    k.label(Lf1)
    k(f"v_lshrrev_b32 v{t}, 7, v0")
    k(f"v_mul_u32_u24 v{t}, {g.MT//2*256*1024}, v{t}")
    k(f"v_bfe_u32 v{t+1}, v0, 6, 1")
    k(f"v_mul_u32_u24 v{t+1}, {g.NT*1024}, v{t+1}")
    k(f"v_add_u32 v{t}, v{t}, v{t+1}")
    k(f"v_and_b32 v{t+1}, 63, v0")
    k(f"v_lshl_add_u32 v{t}, v{t+1}, 4, v{t}")
    k(f"s_mul_i32 s27, s5, {BM//32*256*1024}")
    k("s_lshl_b32 s28, s25, 6")
    k("s_add_u32 s27, s27, s28")
    k("s_add_u32 s27, s27, s22")
    k(f"v_add_u32 v{t}, s27, v{t}")
    epi_frag(k, g, t, pair_j=False, sc=" sc1")
    k.label(Lfin)
    k("s_lshl_b32 s20, s36, 2"); k(f"s_add_u32 s20, s20, {D_MB*4}")
    k("s_sub_u32 s21, s37, 32")
    k("s_cmp_lt_u32 s21, 64")
    k("s_cselect_b32 s21, 1, 0x10000")
    signal(k, 20, 21)
    k.branch(f"s_branch {Lnext}")

def task_prep(k, Lnext):
    LB = k.newlabel('LpB'); Lc = k.newlabel('Lpc')
    k("s_cmp_ge_u32 s5, 128")
    k.branch(f"s_cbranch_scc1 {LB}")
    make_srd(k, 8, P_WO, 4096 * 1152)
    k("s_mul_i32 s20, s5, 36864")
    k.branch(f"s_branch {Lc}")
    k.label(LB)
    make_srd(k, 8, P_WOB, 576 * 1152)
    k("s_sub_u32 s20, s5, 128")
    k("s_mul_i32 s20, s20, 36864")
    k.label(Lc)
    k("v_lshlrev_b32 v1, 4, v0")
    for j in range(9):
        k(f"buffer_load_dwordx4 {v(16+4*j,4)}, v1, s[8:11], s20 offen")
        k("s_add_u32 s20, s20, 4096")
    for j in range(9):
        k(f"s_waitcnt vmcnt({8-j})")
        k(f"ds_write_b128 v1, {v(16+4*j,4)} offset:{j*4096}")
    k("s_waitcnt lgkmcnt(0)")
    k("s_barrier")
    k("v_bfe_u32 v2, v0, 4, 2"); k("v_bfe_u32 v3, v0, 2, 2")
    k("v_lshl_add_u32 v4, v2, 2, v3")
    k("v_lshl_add_u32 v5, v2, 3, v3")
    k("s_cmp_lt_u32 s5, 128")
    k("s_cselect_b64 s[6:7], -1, 0")
    k("v_cndmask_b32 v4, v5, v4, s[6:7]")
    k("v_mul_u32_u24 v4, 1152, v4")
    k("v_and_b32 v5, 3, v0")
    k("v_lshl_add_u32 v4, v5, 3, v4")
    k("s_mul_i32 s21, s100, 288")
    k("v_add_u32 v4, s21, v4")
    k(f"s_cselect_b32 s21, 16, 4")
    k("s_mul_i32 s21, s21, 1152")
    k("v_add_u32 v5, s21, v4")
    for T in range(9):
        k(f"ds_read_b64_tr_b16 {v(16+4*T,2)}, v4 offset:{T*32}")
        k(f"ds_read_b64_tr_b16 {v(18+4*T,2)}, v5 offset:{T*32}")
    k("v_and_b32 v6, 63, v0")
    k("v_lshlrev_b32 v6, 4, v6")
    k("s_mul_i32 s20, s5, 36864"); k("s_mul_i32 s21, s100, 9216"); k("s_add_u32 s20, s20, s21")
    k(f"s_add_u32 s20, s20, {WS_WOF}")
    k("s_waitcnt lgkmcnt(0)")
    for T in range(9):
        k(f"buffer_store_dwordx4 {v(16+4*T,4)}, v6, s[16:19], s20 offen sc1")
        k("s_add_u32 s20, s20, 1024")
    k(f"s_mov_b32 s20, {D_PREP*4}"); k("s_mov_b32 s21, 1")
    signal(k, 20, 21)
    k.branch(f"s_branch {Lnext}")

def task_attnb(k, Lnext):
    k("s_lshr_b32 s20, s5, 3")
    k("s_and_b32 s21, s5, 7")
    k("s_lshl_b32 s21, s21, 2")
    k("s_add_u32 s21, s21, s100")
    for d in range(3):
        k("s_lshr_b32 s22, s20, 3")
        k(f"s_sub_i32 s22, s22, {d}")
        k("s_max_i32 s22, s22, 0")
        k("s_lshl_b32 s22, s22, 2"); k(f"s_add_u32 s22, s22, {D_MB*4}")
        wait_field(k, 22, 16, 16, 46)
    k(f"s_add_u32 s8, s{P_WS}, {WS_QKB}")
    k(f"s_addc_u32 s9, s{P_WS+1}, 0")
    k("s_and_b32 s9, s9, 0xffff")
    k(f"s_mov_b32 s10, {2048*2304}")
    k("s_mov_b32 s11, 0x00020000")
    k("v_and_b32 v1, 63, v0")
    k("v_and_b32 v3, 15, v1")
    k("v_lshrrev_b32 v4, 4, v1")
    k("v_mul_u32_u24 v5, 2304, v3")
    k("v_lshl_add_u32 v5, v4, 4, v5")
    k("s_mul_i32 s22, s21, 36")
    k("v_add_u32 v5, s22, v5")
    k("s_mul_i32 s23, s20, 36864")
    k("buffer_load_dwordx4 v[8:11], v5, s[8:11], s23 offen sc1")
    KF = lambda u: 16 + 4 * u
    for u in range(17):
        k(f"s_add_i32 s26, s20, {u-16}")
        k("s_max_i32 s26, s26, 0")
        k("s_mul_i32 s26, s26, 36864")
        k(f"s_add_u32 s26, s26, 1152")
        k(f"buffer_load_dwordx4 {v(KF(u),4)}, v5, s[8:11], s26 offen sc1")
    k("s_mul_i32 s22, s21, 18")
    k("v_add_u32 v6, s22, v3")
    k("v_lshlrev_b32 v6, 12, v6")
    k("v_lshl_add_u32 v6, v4, 3, v6")
    VF = lambda t, p: 160 + (t * 9 + p) * 4
    for p in range(9):
        for hh in range(2):
            u = min(2 * p + hh, 16)
            k(f"s_add_i32 s26, s20, {u-16}")
            k("s_max_i32 s26, s26, 0")
            k("s_lshl_b32 s26, s26, 5")
            k(f"s_add_u32 s26, s26, {WS_VTB}")
            k("s_add_u32 s27, s26, 65536")
            k(f"buffer_load_dwordx2 {v(VF(0,p)+2*hh,2)}, v6, s[16:19], s26 offen sc1")
            k(f"buffer_load_dwordx2 {v(VF(1,p)+2*hh,2)}, v6, s[16:19], s27 offen sc1")
    k("s_waitcnt vmcnt(53)")
    k("v_cmp_gt_u32 vcc, 3, v4")
    k("v_cndmask_b32 v8, 0, v8, vcc")
    k("v_cmp_gt_u32 vcc, 2, v4")
    for r in (9, 10, 11): k(f"v_cndmask_b32 v{r}, 0, v{r}, vcc")
    S = lambda u: 88 + 4 * u
    for u in range(17):
        k(f"s_waitcnt vmcnt({36 + 16 - u})")
        k(f"v_mfma_f32_16x16x32_bf16 {v(S(u),4)}, {v(KF(u),4)}, v[8:11], 0")
    allr = list(range(88, 156))
    rnd_pairs(k, allr, 7)
    k("s_mov_b32 s30, 0x3e715bef")
    for i in allr: k(f"v_mul_f32 v{i}, s30, v{i}")
    rnd_pairs(k, allr, 7)
    k("v_mov_b32 v12, 0xf149f2ca")
    k("v_lshlrev_b32 v13, 2, v4")
    for r in range(4):
        k(f"v_add_u32 v14, {r}, v13")
        k("v_cmp_le_u32 vcc, v14, v3")
        k(f"v_cndmask_b32 v{S(16)+r}, v12, v{S(16)+r}, vcc")
        k(f"v_cndmask_b32 v{S(0)+r}, v{S(0)+r}, v12, vcc")
    Lskip = k.newlabel('Lsk')
    k("s_cmp_ge_u32 s20, 16")
    k.branch(f"s_cbranch_scc1 {Lskip}")
    for u in range(16):
        k(f"s_cmp_ge_u32 s20, {16-u}")
        k("s_cselect_b64 s[28:29], -1, 0")
        for r in range(4):
            k(f"v_cndmask_b32 v{S(u)+r}, v12, v{S(u)+r}, s[28:29]")
    k.label(Lskip)
    k(f"v_max3_f32 v12, v88, v89, v90"); k(f"v_max3_f32 v13, v91, v92, v93")
    i = 94
    while i < 156:
        k(f"v_max3_f32 v12, v12, v{i}, v{i+1}")
        if i + 3 < 156: k(f"v_max3_f32 v13, v13, v{i+2}, v{i+3}")
        i += 4
    k("v_max_f32 v12, v12, v13")
    xlane(k, "v_max_f32", 12, 13)
    k("s_mov_b32 s31, 0x3fb8aa3b")
    for r in allr: k(f"v_sub_f32 v{r}, v{r}, v12")
    for r in allr: k(f"v_mul_f32 v{r}, s31, v{r}")
    for r in allr: k(f"v_exp_f32 v{r}, v{r}")
    k("v_pk_add_f32 v[12:13], v[88:89], v[90:91]")
    for i in range(92, 156, 2): k(f"v_pk_add_f32 v[12:13], v[12:13], {v(i,2)}")
    k("v_add_f32 v12, v12, v13")
    xlane(k, "v_add_f32", 12, 13)
    k("v_rcp_f32 v12, v12")
    k("v_mov_b32 v13, v12")
    for i in range(88, 156, 2): k(f"v_pk_mul_f32 {v(i,2)}, {v(i,2)}, v[12:13]")
    PF = lambda p: 16 + 4 * p
    for p in range(9):
        for hh in range(2):
            u = 2 * p + hh
            if u <= 16:
                k(f"v_cvt_pk_bf16_f32 v{PF(p)+2*hh}, v{S(u)}, v{S(u)+1}")
                k(f"v_cvt_pk_bf16_f32 v{PF(p)+2*hh+1}, v{S(u)+2}, v{S(u)+3}")
            else:
                k(f"v_mov_b32 v{PF(p)+2*hh}, 0"); k(f"v_mov_b32 v{PF(p)+2*hh+1}, 0")
    k("s_waitcnt vmcnt(0)")
    for p in range(9):
        for t in range(2):
            c = v(60 + 4 * t, 4)
            k(f"v_mfma_f32_16x16x32_bf16 {c}, {v(VF(t,p),4)}, {v(PF(p),4)}, {c if p else '0'}")
    k("v_mul_u32_u24 v5, 1152, v3")
    k("v_lshl_add_u32 v5, v4, 3, v5")
    k("s_mul_i32 s22, s21, 36"); k("s_mul_i32 s23, s20, 18432"); k("s_add_u32 s22, s22, s23")
    k(f"s_add_u32 s22, s22, {WS_OB}")
    k("v_cvt_pk_bf16_f32 v60, v60, v61"); k("v_cvt_pk_bf16_f32 v61, v62, v63")
    k("v_cvt_pk_bf16_f32 v64, v64, v65")
    k("buffer_store_dwordx2 v[60:61], v5, s[16:19], s22 offen sc1")
    k("s_mov_b64 exec, 0xffff")
    k("buffer_store_dword v64, v5, s[16:19], s22 offen offset:32 sc1")
    k("s_mov_b64 exec, -1")
    seg_sig(k, "s20", 1)
    k.branch(f"s_branch {Lnext}")

def seg_sig(k, s_src, shr):
    k(f"s_lshr_b32 s22, {s_src}, {shr}")
    k("s_lshr_b32 s23, s22, 1"); k("s_lshl_b32 s23, s23, 2"); k(f"s_add_u32 s23, s23, {D_SEG*4}")
    k("s_and_b32 s22, s22, 1"); k("s_lshl_b32 s22, s22, 4")
    k("s_lshl_b32 s22, 0x100, s22")
    signal(k, 23, 22)

def task_attna(k, Lnext):
    k("s_lshl_b32 s21, s21, 2")
    k("s_add_u32 s21, s21, s100")
    k("s_lshr_b32 s22, s20, 2"); k("s_lshl_b32 s22, s22, 2"); k(f"s_add_u32 s22, s22, {D_MB*4}")
    wait_field(k, 22, 0, 16, 64)
    wait_field(k, 22, 16, 16, 46)
    k("s_lshr_b32 s22, s20, 1"); k("s_lshl_b32 s22, s22, 2"); k(f"s_add_u32 s22, s22, {D_SEG*4}")
    k("s_and_b32 s23, s20, 1"); k("s_lshl_b32 s23, s23, 4")
    wait_field(k, 22, "s23", 8, 128)
    make_srd(k, 8, P_X, 2048 * 1152)
    make_srd(k, 12, P_GW, 1152)
    k("v_and_b32 v1, 63, v0")
    k("v_lshlrev_b32 v2, 4, v1")
    k("v_and_b32 v3, 15, v1")
    k("v_lshrrev_b32 v4, 4, v1")
    k("v_and_b32 v5, 7, v1")
    k("v_lshl_add_u32 v5, v4, 3, v5")
    k("v_lshlrev_b32 v5, 4, v5")
    k("v_and_b32 v6, 31, v1")
    k("v_lshlrev_b32 v6, 4, v6")
    k("s_lshl_b32 s22, s20, 18")
    k("s_lshl_b32 s23, s21, 12")
    k("s_add_u32 s22, s22, s23")
    QF = lambda t, ks: 16 + (t * 4 + ks) * 4
    KF = lambda t, ks: 48 + (t * 4 + ks) * 4
    KM = lambda ks: 80 + ks * 4
    VT = lambda et: 96 + et * 4
    VM = lambda w: 128 + w * 4
    for t in range(2):
        k(f"s_add_u32 s24, s22, {WS_QX + t*131072}")
        for ks in range(4):
            k(f"buffer_load_dwordx4 {v(QF(t,ks),4)}, v2, s[16:19], s24 offen offset:{ks*1024} sc1")
    for t in range(2):
        k(f"s_add_u32 s24, s22, {WS_KX + t*131072}")
        for ks in range(4):
            k(f"buffer_load_dwordx4 {v(KF(t,ks),4)}, v2, s[16:19], s24 offen offset:{ks*1024} sc1")
    k("s_lshl_b32 s24, s20, 16"); k("s_lshl_b32 s26, s21, 11"); k("s_add_u32 s24, s24, s26")
    k(f"s_add_u32 s26, s24, {WS_KM}")
    for ks in range(4):
        k(f"buffer_load_dwordx4 {v(KM(ks),4)}, v5, s[16:19], s26 offen offset:{ks*512} sc1")
    k(f"s_add_u32 s26, s24, {WS_VMT}")
    for w in range(4):
        k(f"buffer_load_dwordx4 {v(VM(w),4)}, v6, s[16:19], s26 offen offset:{w*512} sc1")
    k("s_lshl_b32 s24, s20, 18"); k("s_lshl_b32 s26, s21, 13"); k("s_add_u32 s24, s24, s26")
    k(f"s_add_u32 s24, s24, {WS_VT}")
    k("s_add_u32 s26, s24, 4096")
    for et in range(8):
        k(f"buffer_load_dwordx4 {v(VT(et),4)}, v2, s[16:19], s{24 if et < 4 else 26} offen offset:{(et%4)*1024} sc1")
    k("s_lshl_b32 s27, s20, 5"); k("s_add_u32 s27, s27, s21"); k("s_mul_i32 s28, s27, 1152")
    k("buffer_load_dwordx4 v[200:203], v2, s[8:11], s28 offen")
    k("buffer_load_dwordx4 v[204:207], v2, s[12:15], 0 offen")
    for r in range(208, 216): k(f"v_mov_b32 v{r}, 0")
    k("s_mov_b64 exec, 0xff")
    k("buffer_load_dwordx4 v[208:211], v2, s[8:11], s28 offen offset:1024")
    k("buffer_load_dwordx4 v[212:215], v2, s[12:15], 0 offen offset:1024")
    k("s_mov_b64 exec, -1")
    k("s_waitcnt vmcnt(16)")
    SA, SB, SC_, SD, SE = 144, 148, 152, 156, 160
    for ks in range(4):
        c = lambda r: (v(r, 4) if ks else "0")
        k(f"v_mfma_f32_16x16x32_bf16 {v(SA,4)}, {v(KF(0,ks),4)}, {v(QF(0,ks),4)}, {c(SA)}")
        k(f"v_mfma_f32_16x16x32_bf16 {v(SB,4)}, {v(KF(0,ks),4)}, {v(QF(1,ks),4)}, {c(SB)}")
        k(f"v_mfma_f32_16x16x32_bf16 {v(SC_,4)}, {v(KF(1,ks),4)}, {v(QF(1,ks),4)}, {c(SC_)}")
        k(f"v_mfma_f32_16x16x32_bf16 {v(SD,4)}, {v(KM(ks),4)}, {v(QF(0,ks),4)}, {c(SD)}")
        k(f"v_mfma_f32_16x16x32_bf16 {v(SE,4)}, {v(KM(ks),4)}, {v(QF(1,ks),4)}, {c(SE)}")
    allr = list(range(144, 164))
    rnd_pairs(k, allr, 7)
    k("s_mov_b32 s30, 0x3db504f3")
    for i in allr: k(f"v_mul_f32 v{i}, s30, v{i}")
    rnd_pairs(k, allr, 7)
    k("v_mov_b32 v8, 0xf149f2ca")
    k("v_lshlrev_b32 v9, 2, v4")
    for r in range(4):
        k(f"v_add_u32 v10, {r}, v9")
        k("v_cmp_le_u32 vcc, v10, v3")
        k(f"v_cndmask_b32 v{SA+r}, v8, v{SA+r}, vcc")
        k(f"v_cndmask_b32 v{SC_+r}, v8, v{SC_+r}, vcc")
    k("v_cmp_gt_u32 vcc, 2, v4")
    for r in range(4):
        k(f"v_cndmask_b32 v{SD+r}, v8, v{SD+r}, vcc")
        k(f"v_cndmask_b32 v{SE+r}, v8, v{SE+r}, vcc")
    k("s_mov_b32 s31, 0x3fb8aa3b")
    def softmax(regs, m, t):
        k(f"v_max3_f32 v{m}, v{regs[0]}, v{regs[1]}, v{regs[2]}")
        i = 3
        while i < len(regs):
            if i + 1 < len(regs):
                k(f"v_max3_f32 v{m}, v{m}, v{regs[i]}, v{regs[i+1]}"); i += 2
            else:
                k(f"v_max_f32 v{m}, v{m}, v{regs[i]}"); i += 1
        xlane(k, "v_max_f32", m, t)
        for r in regs: k(f"v_sub_f32 v{r}, v{r}, v{m}")
        for r in regs: k(f"v_mul_f32 v{r}, s31, v{r}")
        for r in regs: k(f"v_exp_f32 v{r}, v{r}")
        k(f"v_add_f32 v{m}, v{regs[0]}, v{regs[1]}")
        for r in regs[2:]: k(f"v_add_f32 v{m}, v{m}, v{r}")
        xlane(k, "v_add_f32", m, t)
        k(f"v_rcp_f32 v{m}, v{m}")
        for r in regs: k(f"v_mul_f32 v{r}, v{r}, v{m}")
    softmax(list(range(SA, SA+4)) + list(range(SD, SD+4)), 10, 11)
    softmax(list(range(SB, SB+8)) + list(range(SE, SE+4)), 12, 13)
    k(f"v_cvt_pk_bf16_f32 v164, v{SA}, v{SA+1}"); k(f"v_cvt_pk_bf16_f32 v165, v{SA+2}, v{SA+3}")
    k("v_mov_b32 v166, 0"); k("v_mov_b32 v167, 0")
    k(f"v_cvt_pk_bf16_f32 v168, v{SD}, v{SD+1}"); k(f"v_cvt_pk_bf16_f32 v169, v{SD+2}, v{SD+3}")
    k(f"v_cvt_pk_bf16_f32 v170, v{SE}, v{SE+1}"); k(f"v_cvt_pk_bf16_f32 v171, v{SE+2}, v{SE+3}")
    k(f"v_cvt_pk_bf16_f32 v172, v{SB}, v{SB+1}"); k(f"v_cvt_pk_bf16_f32 v173, v{SB+2}, v{SB+3}")
    k(f"v_cvt_pk_bf16_f32 v174, v{SC_}, v{SC_+1}"); k(f"v_cvt_pk_bf16_f32 v175, v{SC_+2}, v{SC_+3}")
    k("s_waitcnt vmcnt(4)")
    O = lambda qt, et: 16 + (qt * 8 + et) * 4
    for qt in range(2):
        px = 164 if qt == 0 else 172
        pm = 168 if qt == 0 else 170
        for et in range(8):
            k(f"v_mfma_f32_16x16x32_bf16 {v(O(qt,et),4)}, {v(VT(et),4)}, {v(px,4)}, 0")
        for et in range(8):
            k(f"v_mfma_f32_16x16x16_bf16 {v(O(qt,et),4)}, {v(VM(et//2)+2*(et%2),2)}, {v(pm,2)}, {v(O(qt,et),4)}")
    for qt in range(2):
        k(f"s_add_u32 s24, s22, {WS_OA + qt*131072}")
        for j in range(4):
            o = O(qt, 2 * j)
            for n in range(4):
                k(f"v_cvt_pk_bf16_f32 v{o+n}, v{o+2*n}, v{o+2*n+1}")
            k(f"buffer_store_dwordx4 {v(o,4)}, v2, s[16:19], s24 offen offset:{j*1024} sc1")
    k("s_waitcnt vmcnt(8)")
    k("v_mov_b32 v100, 0")
    for j in range(8):
        xr = 200 + j if j < 4 else 204 + j
        wr = xr + 4
        k(f"v_lshlrev_b32 v96, 16, v{xr}"); k(f"v_and_b32 v97, 0xffff0000, v{xr}")
        k(f"v_lshlrev_b32 v98, 16, v{wr}"); k(f"v_and_b32 v99, 0xffff0000, v{wr}")
        k("v_mul_f32 v96, v96, v98"); k("v_mul_f32 v97, v97, v99")
        rnd_pairs(k, [96, 97], 98)
        k("v_add_f32 v100, v100, v96"); k("v_add_f32 v100, v100, v97")
    k("v_add_f32_dpp v100, v100, v100 quad_perm:[1,0,3,2] row_mask:0xf bank_mask:0xf")
    k("v_add_f32_dpp v100, v100, v100 quad_perm:[2,3,0,1] row_mask:0xf bank_mask:0xf")
    k("v_add_f32_dpp v100, v100, v100 row_half_mirror row_mask:0xf bank_mask:0xf")
    k("v_add_f32_dpp v100, v100, v100 row_mirror row_mask:0xf bank_mask:0xf")
    xlane(k, "v_add_f32", 100, 101)
    k("v_mov_b32 v101, v100")
    rnd_pairs(k, [100, 101], 98)
    k("v_mul_f32 v100, 0xbfb8aa3b, v100")
    k("v_exp_f32 v100, v100")
    k("v_add_f32 v100, 1.0, v100")
    k("v_rcp_f32 v100, v100")
    k("v_mov_b32 v101, v100")
    rnd_pairs(k, [100, 101], 98)
    k("s_lshl_b32 s27, s27, 2")
    k(f"s_add_u32 s27, s27, {WS_GATE}")
    k("v_mov_b32 v101, 0")
    k("s_mov_b64 exec, 1")
    k("buffer_store_dword v100, v101, s[16:19], s27 offen sc1")
    k("s_mov_b64 exec, -1")
    seg_sig(k, "s20", 0)
    k.branch(f"s_branch {Lnext}")

def task_final(k, Lnext):
    NT = FIN_N // 16
    k(f"s_mov_b32 s22, {D_PREP*4}")
    wait_field(k, 22, 0, 16, N_PREP)
    k("s_lshr_b32 s22, s20, 1"); k("s_lshl_b32 s22, s22, 2"); k(f"s_add_u32 s22, s22, {D_SEG*4}")
    k("s_and_b32 s23, s20, 1"); k("s_lshl_b32 s23, s23, 4"); k("s_add_u32 s23, s23, 8")
    wait_field(k, 22, "s23", 8, 24)
    make_srd(k, 8, P_OUT, 2048 * 1152)
    k("v_and_b32 v1, 63, v0")
    k("v_lshlrev_b32 v2, 4, v1")
    k("v_and_b32 v3, 15, v1")
    k("v_lshrrev_b32 v4, 4, v1")
    k("v_mul_u32_u24 v5, 1152, v3")
    k("v_lshl_add_u32 v5, v4, 4, v5")
    k("s_lshl_b32 s24, s20, 18"); k("s_lshl_b32 s25, s100, 10"); k("s_add_u32 s24, s24, s25")
    k(f"s_add_u32 s24, s24, {WS_OA}")
    k("s_add_u32 s25, s24, 131072")
    k("s_mul_i32 s26, s100, 36864"); k(f"s_mul_i32 s27, s21, {NT*1024}"); k("s_add_u32 s26, s26, s27")
    k(f"s_add_u32 s26, s26, {WS_WOF}")
    nld = 2 + NT
    BATCH = 4
    SET = lambda b: 16 + b * BATCH * nld * 4
    acc = lambda part, mt, j: ((part * 2 + mt) * NT + j) * 4
    for i in range(4 * NT * 4): k(f"v_accvgpr_write_b32 a{i}, 0")
    steps = [('a', i) for i in range(32)] + [('b', i) for i in range(5)]
    batches = [steps[i:i+BATCH] for i in range(0, len(steps), BATCH)]
    def load_batch(bi):
        base = SET(bi & 1)
        for n, (kind, i) in enumerate(batches[bi]):
            r = base + n * nld * 4
            if kind == 'a':
                k(f"buffer_load_dwordx4 {v(r,4)}, v2, s[16:19], s24 offen sc1")
                k(f"buffer_load_dwordx4 {v(r+4,4)}, v2, s[16:19], s25 offen sc1")
                k("s_add_u32 s24, s24, 4096"); k("s_add_u32 s25, s25, 4096")
            else:
                if i == 0:
                    k("s_mul_i32 s24, s20, 36864"); k("s_lshl_b32 s25, s100, 6"); k("s_add_u32 s24, s24, s25")
                    k(f"s_add_u32 s24, s24, {WS_OB}")
                    k("s_add_u32 s25, s24, 18432")
                k(f"buffer_load_dwordx4 {v(r,4)}, v5, s[16:19], s24 offen sc1")
                k(f"buffer_load_dwordx4 {v(r+4,4)}, v5, s[16:19], s25 offen sc1")
                k("s_add_u32 s24, s24, 256"); k("s_add_u32 s25, s25, 256")
            for j in range(NT):
                k(f"buffer_load_dwordx4 {v(r+8+4*j,4)}, v2, s[16:19], s26 offen offset:{j*1024} sc1")
            k(f"s_add_u32 s26, s26, {4*36864}")
    def comp_batch(bi, outstanding_after):
        base = SET(bi & 1)
        nb = len(batches[bi])
        for n, (kind, i) in enumerate(batches[bi]):
            r = base + n * nld * 4
            k(f"s_waitcnt vmcnt({min(63,(nb-1-n)*nld + outstanding_after)})")
            Lsk = None
            if kind == 'b' and i == 4:
                Lsk = k.newlabel('Lfs')
                k("s_cmp_ge_u32 s100, 2")
                k.branch(f"s_cbranch_scc1 {Lsk}")
            part = 0 if kind == 'a' else 1
            for mt in range(2):
                for j in range(NT):
                    c = a(acc(part, mt, j), 4)
                    k(f"v_mfma_f32_16x16x32_bf16 {c}, {v(r+8+4*j,4)}, {v(r+4*mt,4)}, {c}")
            if Lsk: k.label(Lsk)
    load_batch(0)
    for bi in range(len(batches)):
        nxt = 0
        if bi + 1 < len(batches):
            load_batch(bi + 1); nxt = len(batches[bi + 1]) * nld
        comp_batch(bi, nxt)
    NTI = 4 * NT
    k(f"s_mul_i32 s24, s100, {NTI*1024}")
    k("v_add_u32 v6, s24, v2")
    for ti in range(NTI):
        k(f"ds_write_b128 v6, {a(ti*4,4)} offset:{ti*1024}")
    k("s_waitcnt lgkmcnt(0)")
    k("s_barrier")
    per = 2 * NT // 4
    k(f"s_mul_i32 s24, s100, {per*1024}")
    k("v_add_u32 v6, s24, v2")
    assert NT == 4
    k("s_lshr_b32 s25, s100, 1")
    k("s_lshl_b32 s26, s20, 5"); k("s_lshl_b32 s27, s25, 4"); k("s_add_u32 s26, s26, s27")
    k("v_add_u32 v7, s26, v3")
    k("v_lshlrev_b32 v8, 2, v7")
    k(f"s_mov_b32 s27, {WS_GATE}")
    k("buffer_load_dword v9, v8, s[16:19], s27 offen sc1")
    for n in range(per):
        for part in range(2):
            for u in range(4):
                k(f"ds_read_b128 {v(16+((n*2+part)*4+u)*4,4)}, v6 offset:{u*NTI*1024 + (part*2*NT + n)*1024}")
    k("v_mul_u32_u24 v8, 1152, v7")
    k("v_lshl_add_u32 v8, v4, 3, v8")
    k("s_and_b32 s25, s100, 1"); k("s_lshl_b32 s25, s25, 6"); k(f"s_mul_i32 s26, s21, {FIN_N*2}"); k("s_add_u32 s25, s25, s26")
    k("v_add_u32 v8, s25, v8")
    k("s_waitcnt vmcnt(0) lgkmcnt(0)")
    k("v_sub_f32 v10, 1.0, v9"); k("v_mov_b32 v11, v10")
    rnd_pairs(k, [10, 11], 12)
    for n in range(per):
        for part in range(2):
            b0 = 16 + ((n * 2 + part) * 4) * 4
            for r in (0, 2):
                k(f"v_pk_add_f32 {v(b0+r,2)}, {v(b0+r,2)}, {v(b0+4+r,2)}")
                k(f"v_pk_add_f32 {v(b0+8+r,2)}, {v(b0+8+r,2)}, {v(b0+12+r,2)}")
            for r in (0, 2):
                k(f"v_pk_add_f32 {v(b0+r,2)}, {v(b0+r,2)}, {v(b0+8+r,2)}")
        A0 = 16 + (n * 2) * 16; B0 = A0 + 16
        rnd_pairs(k, list(range(A0, A0+4)), 12); rnd_pairs(k, list(range(B0, B0+4)), 12)
        for r in range(4):
            k(f"v_mul_f32 v{A0+r}, v9, v{A0+r}"); k(f"v_mul_f32 v{B0+r}, v10, v{B0+r}")
        rnd_pairs(k, list(range(A0, A0+4)), 12); rnd_pairs(k, list(range(B0, B0+4)), 12)
        for r in range(4): k(f"v_add_f32 v{A0+r}, v{A0+r}, v{B0+r}")
        k(f"v_cvt_pk_bf16_f32 v{A0+4}, v{A0}, v{A0+1}"); k(f"v_cvt_pk_bf16_f32 v{A0+5}, v{A0+2}, v{A0+3}")
        k(f"buffer_store_dwordx2 {v(A0+4,2)}, v8, s[8:11], 0 offen offset:{n*32}")
    k("s_barrier")
    k.branch(f"s_branch {Lnext}")

def gen_worker(k, Lworker, Lend):
    k.label(Lworker)
    for i in range(4): k(f"s_mov_b32 s{92+i}, s{12+i}")
    k("s_mov_b32 s100, s25")
    Lnext = k.newlabel('Lnext')
    k.label(Lnext)
    Lf = k.newlabel('Lfetch')
    k("s_cmp_lg_u32 s100, 0")
    k.branch(f"s_cbranch_scc1 {Lf}")
    k("s_mov_b64 exec, 1")
    k(f"v_mov_b32 v1, {D_QUEUE*4}"); k("v_mov_b32 v2, 1")
    k("buffer_atomic_add v2, v1, s[92:95], 0 offen sc0")
    k(f"v_mov_b32 v1, {L_TASK}")
    k("s_waitcnt vmcnt(0)")
    k("ds_write_b32 v1, v2")
    k("s_waitcnt lgkmcnt(0)")
    k("s_mov_b64 exec, -1")
    k.label(Lf)
    k("s_barrier")
    k(f"v_mov_b32 v1, {L_TASK}")
    k("ds_read_b32 v2, v1")
    k("s_waitcnt lgkmcnt(0)")
    k("v_readfirstlane_b32 s101, v2")
    k("s_barrier")
    LtP, LtQ, LtB, LtR, LtAB, LtS = [k.newlabel('Lt') for _ in range(6)]
    Lproj, Lattna, Lfinal = k.newlabel('Lproj'), k.newlabel('Lattna'), k.newlabel('Lfinal')
    k(f"s_cmp_ge_u32 s101, {NTASK}"); k.branch(f"s_cbranch_scc1 {Lend}")
    k(f"s_cmp_ge_u32 s101, {T0_SEG}"); k.branch(f"s_cbranch_scc1 {LtS}")
    k(f"s_cmp_ge_u32 s101, {T0_AB}"); k.branch(f"s_cbranch_scc1 {LtAB}")
    k(f"s_cmp_ge_u32 s101, {T0_PREP}"); k.branch(f"s_cbranch_scc1 {LtR}")
    k(f"s_cmp_ge_u32 s101, {T0_B}"); k.branch(f"s_cbranch_scc1 {LtB}")
    k(f"s_cmp_ge_u32 s101, {T0_Q}"); k.branch(f"s_cbranch_scc1 {LtQ}")
    k("s_lshr_b32 s5, s101, 6"); k("s_and_b32 s6, s101, 63"); k("s_add_u32 s6, s6, 32")
    k.branch(f"s_branch {Lproj}")
    k.label(LtQ)
    k(f"s_sub_u32 s4, s101, {T0_Q}"); k("s_lshr_b32 s5, s4, 5"); k("s_and_b32 s6, s4, 31")
    k.branch(f"s_branch {Lproj}")
    k.label(LtB)
    k(f"s_sub_u32 s4, s101, {T0_B}")
    k(f"s_mov_b32 s7, {(1<<32)//14 + 1}"); k("s_mul_hi_u32 s5, s4, s7"); k("s_mul_i32 s6, s5, 14"); k("s_sub_u32 s6, s4, s6"); k("s_add_u32 s6, s6, 96")
    k.label(Lproj)
    task_proj(k, Lnext)
    k.label(LtR)
    k(f"s_sub_u32 s5, s101, {T0_PREP}")
    task_prep(k, Lnext)
    k.label(LtAB)
    k(f"s_sub_u32 s5, s101, {T0_AB}")
    task_attnb(k, Lnext)
    k.label(LtS)
    k(f"s_sub_u32 s4, s101, {T0_SEG}")
    k(f"s_mov_b32 s7, {(1<<32)//PER_SEG + 1}"); k("s_mul_hi_u32 s20, s4, s7"); k(f"s_mul_i32 s21, s20, {PER_SEG}"); k("s_sub_u32 s21, s4, s21")
    k("s_cmp_ge_u32 s21, 8"); k.branch(f"s_cbranch_scc1 {Lfinal}")
    task_attna(k, Lnext)
    k.label(Lfinal)
    k("s_sub_u32 s21, s21, 8")
    task_final(k, Lnext)
```

```python
import sys, os
from common import *
from k_chain import gen_chain

HEADER = open('gated_mix__memory_aug_recurrent_mem_tr__sliding_block__prompt.s.ref').read().split('; Override launch')[0]

def build(out):
    k = K()
    launches = []
    descs = []
    name = gen_chain(k, worker="Lworker", prof=bool(os.environ.get('PROF')))
    launches.append(f"; @launch kernel={name} grid=(256,1,1) block=(256,1,1) lds=163840")
    descs.append(kernel_desc(name, 512, 256))
    text = HEADER + "\n".join(launches) + "\n" + '.amdgcn_target "amdgcn-amd-amdhsa--gfx950"\n.text\n' + k.text()
    text += '.section .rodata,"a"\n' + "".join(".p2align 6\n" + d for d in descs)
    open(out, 'w').write(text)

if __name__ == '__main__':
    build(sys.argv[1] if len(sys.argv) > 1 else 'gated_mix__memory_aug_recurrent_mem_tr__sliding_block__prompt.s')
```
